```python
import torch

def _softmax(x, axis=-1):
    return torch.softmax(x, dim=axis)
def _gelu(x):
    return torch.nn.functional.gelu(x, approximate="tanh")
def _silu(x):
    return torch.nn.functional.silu(x)
def _sigmoid(x):
    return torch.sigmoid(x)
def _layernorm(x, axis=-1, eps=1e-5):
    m = x.mean(dim=axis, keepdim=True)
    v = x.var(dim=axis, keepdim=True, unbiased=False)
    return (x - m) / torch.sqrt(v + eps)
def _scatter_add(tgt, idx, src, axis=0):
    return tgt.clone().index_add_(axis, idx, src)
def _segment_sum(src, seg, n):
    out = torch.zeros((n,) + src.shape[1:], dtype=src.dtype)
    return out.index_add_(0, seg, src)
def _pad(x, pw):
    flat = tuple(v for pair in reversed(pw) for v in pair)
    return torch.nn.functional.pad(x, flat)

kernel_name = 'parallel_sum__spectral_gfnet__glu_gated_bilinear__prompt'

def setup_inputs():

    _w = (lambda a: (lambda t: t.to(torch.bfloat16) if t.is_floating_point() else t)(torch.as_tensor(a)))
    def _A_setup():
        B, S, D = 1, 2048, 448
        Df = D // 2 + 1
        return {
            "x": _w((lambda *s: torch.randn(*s, dtype=torch.bfloat16) * 0.05)(B, S, D)),
            "w_r": _w((lambda *s: torch.randn(*s, dtype=torch.bfloat16) * 0.4)(S, Df) * 0.02),
            "w_i": _w((lambda *s: torch.randn(*s, dtype=torch.bfloat16) * 0.4)(S, Df) * 0.02),
        }
    _A_in = _A_setup()

    def _B_setup():
        B, S, D, F = 1, 2048, 448, 1792
        return {
            "x": _w((lambda *s: torch.randn(*s, dtype=torch.bfloat16) * 0.05)(B, S, D)),
            "w_gate": _w((lambda *s: torch.randn(*s, dtype=torch.bfloat16) * 0.2)(D, F) * (D ** -0.5)),
            "w_up": _w((lambda *s: torch.randn(*s, dtype=torch.bfloat16) * 0.2)(D, F) * (D ** -0.5)),
            "w_down": _w((lambda *s: torch.randn(*s, dtype=torch.bfloat16) * 0.2)(F, D) * (F ** -0.5)),
        }
    _B_in = _B_setup()

    return {
        "A_x": _A_in["x"],
        "A_w_r": _A_in["w_r"],
        "A_w_i": _A_in["w_i"],
        "B_x": _B_in["x"],
        "B_w_gate": _B_in["w_gate"],
        "B_w_up": _B_in["w_up"],
        "B_w_down": _B_in["w_down"],
    }

def reference(A_x, A_w_r, A_w_i, B_x, B_w_gate, B_w_up, B_w_down):
    def _A_ref(x, w_r, w_i):
        B, S, D = x.shape
        X = (lambda x, axes=(-2,-1): torch.fft.rfft2(x.float(), dim=axes))(x, axes=(-2, -1))
        W = w_r + 1j * w_i
        X = X * W
        y = (lambda x, s, axes=(-2,-1): torch.fft.irfft2(x, s=s, dim=axes).to(torch.bfloat16))(X, (S, D), axes=(-2, -1))
        return y

    def _B_ref(x, w_gate, w_up, w_down):
        g = torch.einsum("bsd,df->bsf", x, w_gate)
        u = torch.einsum("bsd,df->bsf", x, w_up)
        h = g * u
        return torch.einsum("bsf,fd->bsd", h, w_down)

    x = A_x
    xn = _layernorm(x, axis=-1)
    return x + _A_ref(xn, A_w_r, A_w_i) + _B_ref(xn, B_w_gate, B_w_up, B_w_down)
```

```python
import re

def v(i, n=1):
    return f"v{i}" if n == 1 else f"v[{i}:{i+n-1}]"
def s(i, n=1):
    return f"s{i}" if n == 1 else f"s[{i}:{i+n-1}]"

TRANS = ("v_exp_f32", "v_log_f32", "v_rcp_f32", "v_rsq_f32", "v_sqrt_f32", "v_sin_f32", "v_cos_f32")

def _regs(tok):
    tok = tok.strip()
    tok = tok.lstrip("-").strip("|")
    m = re.fullmatch(r"([vs])(\d+)", tok)
    if m:
        return [(m.group(1), int(m.group(2)))]
    m = re.fullmatch(r"([vs])\[(\d+):(\d+)\]", tok)
    if m:
        return [(m.group(1), i) for i in range(int(m.group(2)), int(m.group(3)) + 1)]
    if tok == "vcc":
        return [("s", 106), ("s", 107)]
    if tok == "vcc_lo":
        return [("s", 106)]
    if tok == "vcc_hi":
        return [("s", 107)]
    if tok == "m0":
        return [("s", 124)]
    if tok == "exec":
        return [("s", 126), ("s", 127)]
    return []

class Ins:
    def __init__(self, text):
        self.text = text
        t = text.split(";")[0].strip()
        self.label = t.endswith(":")
        self.directive = t.startswith(".") or t == ""
        self.op = ""
        self.kind = "none"
        self.rd = set(); self.wr = set()
        self.srcC = set(); self.srcAB = set()
        self.states = 0
        self.dpp = False
        self.lds_dma = False
        self.store_data = set()
        if self.label or self.directive:
            return
        parts = t.split(None, 1)
        self.op = op = parts[0]
        rest = parts[1] if len(parts) > 1 else ""
        ops = []; cur = ""; depth = 0
        for ch in rest:
            if ch == "[": depth += 1
            if ch == "]": depth -= 1
            if ch == "," and depth == 0:
                ops.append(cur.strip()); cur = ""
            else:
                cur += ch
        if cur.strip(): ops.append(cur.strip())
        mods = ""
        if ops:
            last = ops[-1].split(None, 1)
            ops[-1] = last[0]
            mods = last[1] if len(last) > 1 else ""
        self.ops = ops; self.mods = mods
        self.states = 1
        R = lambda toks: set(r for tk in toks for r in _regs(tk))
        if op == "s_nop":
            self.kind = "nop"; self.states = int(ops[0]) + 1
        elif op.startswith("v_mfma"):
            self.kind = "mfma"
            self.passes = 8 if "32x32x16" in op else 4
            self.wr = R(ops[:1]); self.srcAB = R(ops[1:3]); self.srcC = R(ops[3:4])
            self.rd = self.srcAB | self.srcC
        elif op.startswith("v_"):
            self.kind = "valu"
            if op.startswith("v_permlane") and "swap" in op:
                self.wr = R(ops[:2]); self.rd = R(ops[:2])
            elif op.startswith("v_cmp"):
                self.wr = R(ops[:1]); self.rd = R(ops[1:])
            elif op.endswith("_co_u32") or "_co_" in op:
                self.wr = R(ops[:2]); self.rd = R(ops[2:])
            else:
                self.wr = R(ops[:1]); self.rd = R(ops[1:])
                if op.startswith(("v_dot2c", "v_fmac", "v_mac", "v_pk_fmac")) or "_dpp" in op:
                    self.rd |= R(ops[:1])
                if op.startswith("v_cndmask") and len(ops) == 3:
                    self.rd |= {("s", 106), ("s", 107)}
            self.dpp = ("_dpp" in op) or ("quad_perm" in mods) or ("row_" in mods)
            self.trans = op.replace("_e32", "").replace("_e64", "") in TRANS
            self.dot = op.startswith("v_dot")
        elif op.startswith("ds_"):
            self.kind = "ds"
            if op.startswith(("ds_read", "ds_bpermute", "ds_permute", "ds_swizzle")):
                self.wr = R(ops[:1]); self.rd = R(ops[1:])
            else:
                self.rd = R(ops)
        elif op.startswith(("buffer_", "global_")):
            self.kind = "vmem"
            allm = (mods + " ").split()
            if "lds" in allm:
                self.lds_dma = True
                self.rd = R(ops) | {("s", 124)}
            elif "load" in op:
                self.wr = R(ops[:1]); self.rd = R(ops[1:])
            else:
                self.rd = R(ops)
                if op.endswith(("x3", "x4")):
                    self.store_data = R(ops[:1]) if op.startswith("buffer_") else R(ops[1:2])
        elif op.startswith("s_"):
            self.kind = "salu"
            if op.startswith(("s_cmp", "s_cbranch", "s_branch", "s_waitcnt", "s_barrier", "s_endpgm", "s_setprio", "s_bitcmp", "s_sleep")):
                self.rd = R(ops)
            else:
                self.wr = R(ops[:1]); self.rd = R(ops[1:])
        else:
            raise ValueError("unknown op " + text)

def need(p, c):
    n = 0
    vw = {r for r in p.wr if r[0] == "v"}
    sw = {r for r in p.wr if r[0] == "s"}
    if p.kind == "valu":
        if c.kind == "mfma" and vw & c.rd: n = max(n, 2)
        if sw:
            if c.kind == "vmem" and sw & c.rd: n = max(n, 5)
            if c.kind == "valu" and sw & c.rd: n = max(n, 4 if c.op.startswith(("v_readlane", "v_writelane")) else 2)
            if ("s", 126) in sw and (c.kind == "mfma" or c.dpp): n = max(n, 5)
        if c.kind == "valu":
            if c.dpp and vw & c.rd: n = max(n, 2)
            if c.op.startswith(("v_readlane", "v_readfirstlane")) and vw & c.rd: n = max(n, 1)
            if c.op.startswith("v_permlane") and vw & c.rd: n = max(n, 2)
            if p.trans and vw & c.rd: n = max(n, 1)
        if p.trans and c.kind in ("ds", "vmem") and vw & c.rd: n = max(n, 1)
        if p.dot:
            if c.op == p.op:
                srcs = set(r for tk in c.ops[1:] for r in _regs(tk))
                if vw & srcs: n = max(n, 3)
            elif vw & (c.rd | c.wr): n = max(n, 3)
    if p.kind == "mfma":
        full = 12 if p.passes == 8 else 8
        if c.kind == "mfma":
            if vw & c.srcAB: n = max(n, full)
            if vw & c.srcC:
                if not (c.srcC == vw and c.passes == p.passes): n = max(n, 10 if p.passes == 8 else 6)
            elif vw & c.wr: n = max(n, full)
        elif c.kind in ("valu", "ds", "vmem"):
            if vw & (c.rd | c.wr): n = max(n, full)
            if c.kind == "valu" and p.srcC & c.wr: n = max(n, 7 if p.passes == 8 else 3)
    if p.kind == "salu" and ("s", 124) in sw and c.lds_dma: n = max(n, 1)
    if p.kind == "vmem" and p.store_data and (p.store_data & c.wr): n = max(n, 2)
    return n

class Asm:
    def __init__(self):
        self.ins = []
        self.nops_added = 0
    def raw(self, text):
        for ln in text.split("\n"):
            self.ins.append(Ins(ln))
    def I(self, text):
        for ln in text.strip().split("\n"):
            ln = ln.strip()
            if not ln: continue
            c = Ins(ln)
            if c.kind not in ("none",):
                dist = 0; req = 0
                for p in reversed(self.ins):
                    if p.kind == "none": continue
                    if p.op in ("s_branch", "s_endpgm"): break
                    r = need(p, c) - dist
                    if r > req: req = r
                    dist += p.states
                    if dist >= 14: break
                while req > 0:
                    k = min(req, 8)
                    self.ins.append(Ins(f"s_nop {k-1}")); req -= k; self.nops_added += k
            self.ins.append(c)
    def L(self, name):
        self.ins.append(Ins(name + ":"))
    def verify_edges(self):
        lab = {i.text.split(":")[0].strip(): k for k, i in enumerate(self.ins) if i.label}
        bad = 0
        for k, b in enumerate(self.ins):
            if b.op.startswith(("s_cbranch", "s_branch")):
                tgt = lab[b.ops[0]]
                pre = [p for p in self.ins[max(0, k - 40):k + 1] if p.kind != "none"]
                post = [c for c in self.ins[tgt:tgt + 40] if c.kind != "none"]
                d0 = 0
                for c in post:
                    dist = d0
                    for p in reversed(pre):
                        if need(p, c) > dist:
                            print("EDGE HAZARD:", p.text, "->", c.text, "dist", dist); bad += 1
                        dist += p.states
                        if dist >= 14: break
                    d0 += c.states
                    if d0 >= 14 or c.op in ("s_branch", "s_endpgm"): break
        return bad
    def text(self):
        return "\n".join(("" if (i.label or i.directive) else "  ") + i.text for i in self.ins) + "\n"
```

```python
from asmlib import *
from layout import *

MF32 = "v_mfma_f32_32x32x16_bf16"
XR = 98304
MP = 49152
RR = 147456
K1_LDS = 147456 + 512

def srd(a, base, lo, hi, nrec):
    a.I(f"s_mov_b32 {s(base)}, {lo}")
    a.I(f"s_mov_b32 {s(base+1)}, {hi}")
    a.I(f"s_mov_b32 {s(base+2)}, {nrec}")
    a.I(f"s_mov_b32 {s(base+3)}, 0x20000")

def k1_compute(a, typ):
    P = "k1c" + typ
    acc = lambda q, gu: 32 * q + 16 * gu
    Xf = lambda b, q: 128 + 24 * b + 4 * q
    Wf = lambda b, gu: 128 + 24 * b + 16 + 4 * gu
    vXa = [176, 177, 178, 179]; vWa = 180; vL = 181; vT = 182; vT2 = 183
    a.I(f"v_and_b32 {v(vT)}, 31, {v(vL)}")
    a.I(f"v_lshrrev_b32 {v(vT2)}, 1, {v(vT)}")
    a.I(f"v_and_b32 {v(vT2)}, 7, {v(vT2)}")
    a.I(f"v_lshrrev_b32 {v(vXa[1])}, 5, {v(vL)}")
    a.I(f"v_xor_b32 {v(vT2)}, {v(vT2)}, {v(vXa[1])}")
    a.I(f"v_lshlrev_b32 {v(vT2)}, 4, {v(vT2)}")
    a.I(f"v_lshl_add_u32 {v(vXa[0])}, {v(vT)}, 7, {v(vT2)}")
    a.I(f"v_add_u32 {v(vXa[0])}, {XR}, {v(vXa[0])}")
    a.I(f"v_lshlrev_b32 {v(vWa)}, 12, {v(vXa[1])}")
    a.I(f"s_lshl_b32 s18, s17, 8")
    a.I(f"v_add_u32 {v(vWa)}, s18, {v(vWa)}")
    a.I(f"v_bfe_u32 {v(vT)}, {v(vL)}, 2, 2")
    a.I(f"v_lshl_add_u32 {v(vWa)}, {v(vT)}, 6, {v(vWa)}")
    a.I(f"v_bfe_u32 {v(vT)}, {v(vL)}, 4, 1")
    a.I(f"v_lshl_add_u32 {v(vWa)}, {v(vT)}, 5, {v(vWa)}")
    a.I(f"v_and_b32 {v(vT)}, 3, {v(vL)}")
    a.I(f"v_lshl_add_u32 {v(vWa)}, {v(vT)}, 3, {v(vWa)}")
    for kk in (1, 2, 3):
        a.I(f"v_xor_b32 {v(vXa[kk])}, {32*kk}, {v(vXa[0])}")
    for i in range(0, 128, 2):
        a.I(f"v_mov_b64 {v(i,2)}, 0")
    a.I("s_mov_b32 s19, 0")
    a.I("s_mov_b32 s20, 0")

    def reads(buf, kk):
        st = (kk >> 1) * 16384 + (kk & 1) * 8192
        r = []
        r.append(f"ds_read_b64_tr_b16 {v(Wf(buf,0),2)}, {v(vWa)} offset:{st}")
        r.append(f"ds_read_b64_tr_b16 {v(Wf(buf,0)+2,2)}, {v(vWa)} offset:{st+2048}")
        r.append(f"ds_read_b128 {v(Xf(buf,0),4)}, {v(vXa[kk])}")
        r.append(f"ds_read_b64_tr_b16 {v(Wf(buf,1),2)}, {v(vWa)} offset:{st+1024}")
        r.append(f"ds_read_b64_tr_b16 {v(Wf(buf,1)+2,2)}, {v(vWa)} offset:{st+3072}")
        for q in (1, 2, 3):
            r.append(f"ds_read_b128 {v(Xf(buf,q),4)}, {v(vXa[kk])} offset:{q*4096}")
        return r
    def mfmas(buf):
        m = []
        for q in range(4):
            for gu in range(2):
                A, B = (Wf(buf, gu), Xf(buf, q)) if typ == "B" else (Xf(buf, q), Wf(buf, gu))
                m.append(f"{MF32} {v(acc(q,gu),16)}, {v(A,4)}, {v(B,4)}, {v(acc(q,gu),16)}")
        return m

    a.I("s_barrier")
    for r in reads(0, 0): a.I(r)
    a.L(P + "_loop")
    for kk in range(4):
        buf = kk & 1
        m = mfmas(buf)
        r = reads(buf ^ 1, (kk + 1) & 3)
        a.I("s_waitcnt lgkmcnt(0)")
        a.I(m[0])
        if kk == 1:
            a.I("s_cmp_eq_u32 s19, 6")
            a.I(f"s_cbranch_scc1 {P}_skipb")
            a.I("s_barrier")
            a.L(P + "_skipb")
        if kk == 3:
            a.I("s_add_u32 s20, s20, 1")
            a.I("s_cmp_eq_u32 s20, 3")
            a.I("s_cselect_b32 s20, 0, s20")
            a.I("s_cselect_b32 s21, -2, 1")
            a.I("s_lshl_b32 s22, s21, 15")
            a.I("s_lshl_b32 s21, s21, 14")
            a.I(f"v_add_u32 {v(vWa)}, s22, {v(vWa)}")
            a.I(f"v_add_u32 {v(vXa[0])}, s21, {v(vXa[0])}")
            a.I("s_barrier")
        a.I(r[0]); a.I(r[1]); a.I(r[2])
        a.I(m[1])
        a.I(r[3]); a.I(r[4]); a.I(r[5])
        a.I(m[2])
        a.I(r[6]); a.I(r[7])
        a.I(m[3])
        if kk == 3:
            for k2 in (1, 2, 3):
                a.I(f"v_add_u32 {v(vXa[k2])}, s21, {v(vXa[k2])}")
            a.I("s_add_u32 s19, s19, 1")
            a.I("s_cmp_lt_u32 s19, 7")
        for x in m[4:]: a.I(x)
    a.I(f"s_cbranch_scc1 {P}_loop")
    a.I("s_waitcnt lgkmcnt(0)")
    for x in mfmas(0): a.I(x)
    srd(a, 24, "s6", "s7", "0x10000000")
    if typ == "B":
        a.I("s_mul_i32 s28, s15, 7")
        a.I("s_add_u32 s28, s28, s16")
        a.I("s_sub_u32 s28, s28, 1")
        a.I("s_lshl_b32 s28, s28, 13")
        a.I("s_lshl_b32 s29, s17, 11")
        a.I("s_add_u32 s28, s28, s29")
        a.I(f"s_mul_i32 s29, s14, {4*114688}")
        a.I("s_add_u32 s28, s28, s29")
        a.I(f"v_lshlrev_b32 {v(vT)}, 4, {v(vL)}")
        for q in range(4):
            g, u = acc(q, 0), acc(q, 1)
            for i in range(0, 16, 2):
                a.I(f"v_pk_mul_f32 {v(g+i,2)}, {v(g+i,2)}, {v(u+i,2)}")
            for i in range(0, 16, 2):
                a.I(f"v_cvt_pk_bf16_f32 {v(u+i//2)}, {v(g+i)}, {v(g+i+1)}")
            a.I(f"buffer_store_dwordx4 {v(u,4)}, {v(vT)}, s[24:27], s28 offen")
            a.I(f"buffer_store_dwordx4 {v(u+4,4)}, {v(vT)}, s[24:27], s28 offen offset:1024")
            if q < 3: a.I("s_add_u32 s28, s28, 114688")
        a.I("s_endpgm")
    else:
        Zb = lambda b: 128 + 16 * b
        Mf = lambda b: 184 + 24 * b
        a.I(f"v_lshlrev_b32 {v(vT)}, 4, {v(vL)}")
        a.I(f"v_add_u32 {v(vT)}, {MP}, {v(vT)}")
        a.I("s_barrier")
        def mread(q):
            for j in range(6):
                a.I(f"ds_read_b128 {v(Mf(q&1)+4*j,4)}, {v(vT)} offset:{q*6144+j*1024}")
        mread(0); mread(1)
        a.I(f"v_lshrrev_b32 {v(vT2)}, 5, {v(vL)}")
        a.I(f"v_lshlrev_b32 {v(vT2)}, 18, {v(vT2)}")
        a.I(f"v_and_b32 {v(vWa)}, 31, {v(vL)}")
        a.I(f"v_lshl_add_u32 {v(vT2)}, {v(vWa)}, 4, {v(vT2)}")
        a.I("s_lshl_b32 s28, s14, 12")
        a.I("s_lshl_b32 s29, s15, 11")
        a.I("s_add_u32 s28, s28, s29")
        a.I("s_lshl_b32 s29, s17, 9")
        a.I("s_add_u32 s28, s28, s29")
        a.I(f"s_add_u32 s28, s28, {WS_Y}")
        def cvt(q):
            for gu in range(2):
                for i in range(0, 16, 2):
                    a.I(f"v_cvt_pk_bf16_f32 {v(Zb(q&1)+8*gu+i//2)}, {v(acc(q,gu)+i)}, {v(acc(q,gu)+i+1)}")
        cvt(0)
        for q in range(4):
            z = Zb(q & 1); M = Mf(q & 1)
            a.I(f"s_waitcnt lgkmcnt({6 if q < 3 else 0})")
            yr, yi = acc(q, 0), acc(q, 1)
            mm = [
                f"{MF32} {v(yr,16)}, {v(M,4)}, {v(z,4)}, 0",
                f"{MF32} {v(yi,16)}, {v(M,4)}, {v(z+8,4)}, 0",
                f"{MF32} {v(yr,16)}, {v(M+4,4)}, {v(z+4,4)}, {v(yr,16)}",
                f"{MF32} {v(yi,16)}, {v(M+4,4)}, {v(z+12,4)}, {v(yi,16)}",
                f"{MF32} {v(yr,16)}, {v(M+8,4)}, {v(z+8,4)}, {v(yr,16)}",
                f"{MF32} {v(yi,16)}, {v(M+16,4)}, {v(z,4)}, {v(yi,16)}",
                f"{MF32} {v(yr,16)}, {v(M+12,4)}, {v(z+12,4)}, {v(yr,16)}",
                f"{MF32} {v(yi,16)}, {v(M+20,4)}, {v(z+4,4)}, {v(yi,16)}",
            ]
            nxt = []
            if q < 3:
                for gu in range(2):
                    for i in range(0, 16, 2):
                        nxt.append(f"v_cvt_pk_bf16_f32 {v(Zb((q+1)&1)+8*gu+i//2)}, {v(acc(q+1,gu)+i)}, {v(acc(q+1,gu)+i+1)}")
            for j, x in enumerate(mm):
                a.I(x)
                for y in nxt[2*j:2*j+2]: a.I(y)
            if q + 2 < 4: mread(q + 2)
        for i in range(16):
            t = 128 + 4 * (i & 7)
            a.I(f"v_cvt_pk_bf16_f32 {v(t)}, {v(acc(0,0)+i)}, {v(acc(1,0)+i)}")
            a.I(f"v_cvt_pk_bf16_f32 {v(t+2)}, {v(acc(0,1)+i)}, {v(acc(1,1)+i)}")
            a.I(f"v_cvt_pk_bf16_f32 {v(t+1)}, {v(acc(2,0)+i)}, {v(acc(3,0)+i)}")
            a.I(f"v_cvt_pk_bf16_f32 {v(t+3)}, {v(acc(2,1)+i)}, {v(acc(3,1)+i)}")
            a.I(f"buffer_store_dwordx4 {v(t,4)}, {v(vT2)}, s[24:27], s28 offen")
            if i < 15:
                a.I(f"s_add_u32 s28, s28, {(5 if i % 4 == 3 else 1) * 65536}")
        a.I("s_endpgm")


def k1_helper(a):
    vL = 1
    vXo = [2, 3, 4, 5]; vWo = [6, 7]; vXs = 8; vWs = [9, 10]; vT = 11
    cs = lambda gu, aa: 12 + 2 * gu + aa
    sm = lambda i: 16 + i
    sq = lambda i: 20 + i
    TX = 24; TW = 40; T2 = 56
    COS = 64; SIN = 80
    a.I("s_sub_u32 s40, s17, 4")
    a.I("s_lshl_b32 s41, s40, 12")
    a.I("s_lshr_b32 s42, s14, 2")
    a.I("s_and_b32 s43, s14, 3")
    a.I("s_lshl_b32 s43, s43, 4")
    a.I("s_add_u32 s42, s42, s43")
    a.I("s_lshl_b32 s43, s40, 2")
    a.I("s_add_u32 s42, s42, s43")
    a.I("s_mul_i32 s43, s42, 896")
    a.I(f"v_lshrrev_b32 {v(vT)}, 3, {v(vL)}")
    a.I(f"v_mul_u32_u24 {v(vXo[0])}, 57344, {v(vT)}")
    a.I(f"v_add_u32 {v(vXo[0])}, s43, {v(vXo[0])}")
    a.I(f"v_lshrrev_b32 {v(vT)}, 4, {v(vL)}")
    a.I(f"v_and_b32 {v(T2)}, 7, {v(vL)}")
    a.I(f"v_xor_b32 {v(vT)}, {v(vT)}, {v(T2)}")
    a.I(f"v_lshlrev_b32 {v(vT)}, 4, {v(vT)}")
    a.I(f"v_xor_b32 {v(T2)}, 64, {v(vT)}")
    D8 = 8 * 57344 - 1024
    a.I(f"v_add_u32 {v(vXo[1])}, {v(vXo[0])}, {v(T2)}")
    a.I(f"v_add_u32 {v(vXo[0])}, {v(vXo[0])}, {v(vT)}")
    a.I(f"v_add_u32 {v(vXo[3])}, {3*D8}, {v(vXo[1])}")
    a.I(f"v_add_u32 {v(vXo[1])}, {D8}, {v(vXo[1])}")
    a.I(f"v_add_u32 {v(vXo[2])}, {2*D8}, {v(vXo[0])}")
    a.I("s_cmp_eq_u32 s16, 0")
    a.I("s_cbranch_scc1 k1h_selA")
    a.I("s_mov_b32 s36, 3584")
    a.I("s_mul_i32 s37, s15, 7")
    a.I("s_add_u32 s37, s37, s16")
    a.I("s_sub_u32 s37, s37, 1")
    a.I("s_lshl_b32 s37, s37, 8")
    a.I("s_waitcnt lgkmcnt(0)")
    srd(a, 24, "s8", "s9", 448 * 3584)
    srd(a, 28, "s10", "s11", 448 * 3584)
    a.I("s_branch k1h_sel_done")
    a.L("k1h_selA")
    a.I("s_mov_b32 s36, 512")
    a.I("s_lshl_b32 s37, s15, 8")
    a.I("s_getpc_b64 s[24:25]")
    a.I("s_add_u32 s24, s24, tabF@rel32@lo+4")
    a.I("s_addc_u32 s25, s25, tabF@rel32@hi+12")
    a.I("s_mov_b32 s26, 229376")
    a.I("s_mov_b32 s27, 0x20000")
    a.I("s_add_u32 s28, s24, 229376")
    a.I("s_addc_u32 s29, s25, 0")
    a.I("s_mov_b32 s30, 229376")
    a.I("s_mov_b32 s31, 0x20000")
    a.I("s_waitcnt lgkmcnt(0)")
    a.L("k1h_sel_done")
    srd(a, 20, "s4", "s5", 2048 * 896)
    a.I(f"v_bfe_u32 {v(vT)}, {v(vL)}, 2, 2")
    a.I("s_lshl_b32 s38, s40, 3")
    a.I(f"v_add_u32 {v(vT)}, s38, {v(vT)}")
    a.I(f"v_mul_u32_u24 {v(vWo[0])}, s36, {v(vT)}")
    a.I(f"v_lshrrev_b32 {v(vT)}, 4, {v(vL)}")
    a.I(f"v_lshl_add_u32 {v(vWo[0])}, {v(vT)}, 6, {v(vWo[0])}")
    a.I(f"v_and_b32 {v(vT)}, 3, {v(vL)}")
    a.I(f"v_lshl_add_u32 {v(vWo[0])}, {v(vT)}, 4, {v(vWo[0])}")
    a.I(f"v_add_u32 {v(vWo[0])}, s37, {v(vWo[0])}")
    a.I("s_lshl_b32 s38, s36, 2")
    a.I("s_sub_u32 s38, s38, 2048")
    a.I(f"v_add_u32 {v(vWo[1])}, s38, {v(vWo[0])}")
    a.I("s_lshl_b32 s38, s36, 5")
    a.I("s_mov_b32 s39, 0")
    issued = []
    def issueX(b):
        a.I(f"s_add_u32 m0, s41, {XR + (b % 3) * 16384}")
        a.I(f"s_mov_b32 s44, {b*128}")
        for i in range(4):
            a.I(f"buffer_load_dwordx4 {v(vXo[i])}, s[20:23], s44 offen offset:{i*1024} lds")
            issued.append(("X", b))
    def issueW(st):
        a.I(f"s_add_u32 m0, s41, {(st % 6) * 16384}")
        a.I("s_nop 0")
        for aa in range(2):
            a.I(f"buffer_load_dwordx4 {v(vWo[aa])}, s[24:27], s39 offen offset:{aa*2048} lds")
            issued.append(("W", st))
        a.I(f"s_add_u32 m0, s41, {(st % 6) * 16384 + 1024}")
        a.I("s_nop 0")
        for aa in range(2):
            a.I(f"buffer_load_dwordx4 {v(vWo[aa])}, s[28:31], s39 offen offset:{aa*2048} lds")
            issued.append(("W", st))
        a.I("s_add_u32 s39, s39, s38")
    waited = [0]
    def wait(*groups):
        last = max(i for i, g in enumerate(issued) if g in groups) + 1
        if last > waited[0]:
            a.I(f"s_waitcnt vmcnt({len(issued) - last})")
            waited[0] = last
    issueX(0); issueW(0); issueW(1); issueX(1); issueW(2); issueW(3); issueX(2); issueW(4); issueW(5)
    a.I(f"v_lshlrev_b32 {v(vXs)}, 4, {v(vL)}")
    a.I(f"s_add_u32 s44, s41, {XR}")
    a.I(f"v_add_u32 {v(vXs)}, s44, {v(vXs)}")
    a.I(f"v_lshrrev_b32 {v(vT)}, 5, {v(vL)}")
    a.I(f"v_lshlrev_b32 {v(vWs[0])}, 8, {v(vT)}")
    a.I(f"v_bfe_u32 {v(vT)}, {v(vL)}, 2, 2")
    a.I(f"v_lshl_add_u32 {v(vWs[0])}, {v(vT)}, 6, {v(vWs[0])}")
    a.I(f"v_bfe_u32 {v(vT)}, {v(vL)}, 4, 1")
    a.I(f"v_lshl_add_u32 {v(vWs[0])}, {v(vT)}, 5, {v(vWs[0])}")
    a.I(f"v_and_b32 {v(vT)}, 3, {v(vL)}")
    a.I(f"v_lshl_add_u32 {v(vWs[0])}, {v(vT)}, 3, {v(vWs[0])}")
    a.I(f"v_add_u32 {v(vWs[0])}, s41, {v(vWs[0])}")
    a.I(f"v_add_u32 {v(vWs[1])}, 49152, {v(vWs[0])}")
    for i in range(12, 24, 2):
        a.I(f"v_mov_b64 {v(i,2)}, 0")
    a.I("s_mov_b32 s45, 0x3f803f80")
    for k in (1, 2, 3):
        a.I(f"v_cmp_eq_u32 {s(44+2*k,2)}, {k}, {v(vT)}")
    a.I("s_cmp_lg_u32 s16, 0")
    a.I("s_cbranch_scc1 k1h_notrig")
    a.I(f"v_bfe_u32 {v(T2)}, {v(vL)}, 1, 4")
    a.I(f"v_cvt_f32_u32 {v(T2)}, {v(T2)}")
    a.I(f"v_and_b32 {v(T2+1)}, 31, {v(vL)}")
    a.I(f"v_cmp_eq_u32 vcc, 1, {v(T2+1)}")
    a.I(f"v_mov_b32 {v(T2+2)}, 0xc1800000")
    a.I(f"v_cndmask_b32 {v(T2)}, {v(T2)}, {v(T2+2)}, vcc")
    a.I(f"v_lshlrev_b32 {v(T2+1)}, 31, {v(vL)}")
    a.I(f"v_xor_b32 {v(T2)}, {v(T2)}, {v(T2+1)}")
    a.I(f"v_lshrrev_b32 {v(T2+1)}, 5, {v(vL)}")
    a.I(f"v_lshlrev_b32 {v(T2+1)}, 8, {v(T2+1)}")
    a.I(f"v_add_u32 {v(T2+1)}, s42, {v(T2+1)}")
    a.I(f"v_cvt_f32_u32 {v(T2+1)}, {v(T2+1)}")
    a.I(f"v_mul_f32 {v(T2+1)}, {v(T2+1)}, {v(T2)}")
    a.I(f"v_mul_f32 {v(T2+1)}, {f32hex(1/2048)}, {v(T2+1)}")
    a.I(f"v_mul_f32 {v(T2)}, {f32hex(1/32)}, {v(T2)}")
    for p in range(2):
        for e in range(8):
            n = 16 * p + 8 * (e // 4) + e % 4
            r = 8 * p + e
            a.I(f"v_mov_b32 {v(T2+2)}, {f32hex(float(n))}")
            a.I(f"v_fma_f32 {v(T2+3)}, {v(T2)}, {v(T2+2)}, {v(T2+1)}")
            a.I(f"v_fract_f32 {v(T2+3)}, {v(T2+3)}")
            a.I(f"v_cos_f32 {v(COS+r)}, {v(T2+3)}")
            a.I(f"v_sin_f32 {v(SIN+r)}, {v(T2+3)}")
    a.L("k1h_notrig")

    def colsum(st):
        wait(("W", st))
        sl = st % 6
        ad = vWs[sl // 3]; base = (sl % 3) * 16384
        k = 0
        order = []
        for rq in range(2):
            for gu in range(2):
                for aa in range(2):
                    a.I(f"ds_read_b64_tr_b16 {v(TW+2*k,2)}, {v(ad)} offset:{base + rq*2048 + gu*1024 + aa*512}")
                    order.append((k, gu, aa)); k += 1
        for half in range(2):
            a.I(f"s_waitcnt lgkmcnt({4 if half == 0 else 0})")
            for d in range(2):
                for (k, gu, aa) in order[4*half:4*half+4]:
                    a.I(f"v_dot2c_f32_bf16 {v(cs(gu,aa))}, s45, {v(TW+2*k+d)}")
    def xstats(b):
        wait(("X", b))
        for i in range(4):
            a.I(f"ds_read_b128 {v(TX+4*i,4)}, {v(vXs)} offset:{(b%3)*16384 + i*1024}")
        for half in range(2):
            a.I(f"s_waitcnt lgkmcnt({2 if half == 0 else 0})")
            for d in range(4):
                for i in (2*half, 2*half+1):
                    a.I(f"v_dot2c_f32_bf16 {v(sm(i))}, s45, {v(TX+4*i+d)}")
                    a.I(f"v_dot2c_f32_bf16 {v(sq(i))}, {v(TX+4*i+d)}, {v(TX+4*i+d)}")
    for i in range(13):
        wait(("W", i), ("X", i // 2))
        if i == 12: wait(("W", 13))
        a.I("s_barrier")
        if i >= 1 and i + 5 <= 13: issueW(i + 5)
        if i >= 2 and i % 2 == 0 and i // 2 + 2 <= 6: issueX(i // 2 + 2)
        if i == 0:
            colsum(0); xstats(0)
        colsum(i + 1)
        if (i + 1) % 2 == 0: xstats((i + 1) // 2)
    for pat in ("quad_perm:[1,0,3,2]", "quad_perm:[2,3,0,1]", "row_half_mirror"):
        for r in range(16, 24):
            a.I(f"v_add_f32_dpp {v(r)}, {v(r)}, {v(r)} {pat} row_mask:0xf bank_mask:0xf")
    for k in (1, 2, 3):
        a.I(f"v_cndmask_b32 {v(sm(0))}, {v(sm(0))}, {v(sm(k))}, {s(44+2*k,2)}")
        a.I(f"v_cndmask_b32 {v(sq(0))}, {v(sq(0))}, {v(sq(k))}, {s(44+2*k,2)}")
    mean, var = T2, T2 + 1
    a.I(f"v_mul_f32 {v(mean)}, {f32hex(1/448)}, {v(sm(0))}")
    a.I(f"v_mul_f32 {v(var)}, {f32hex(1/448)}, {v(sq(0))}")
    a.I(f"v_fma_f32 {v(var)}, -{v(mean)}, {v(mean)}, {v(var)}")
    a.I(f"v_max_f32 {v(var)}, 0, {v(var)}")
    a.I(f"v_cvt_pk_bf16_f32 {v(TX)}, -{v(mean)}, -{v(mean)}")
    a.I(f"v_cvt_pk_bf16_f32 {v(var)}, {v(var)}, {v(var)}")
    a.I(f"v_and_b32 {v(TX+1)}, 0xffff, {v(TX)}")
    a.I(f"v_lshlrev_b32 {v(var)}, 16, {v(var)}")
    a.I(f"v_mov_b32 {v(TX+2)}, {v(TX)}")
    a.I(f"v_add_f32 {v(var)}, {f32hex(1e-5)}, {v(var)}")
    a.I(f"v_mov_b32 {v(TX+3)}, {v(TX+1)}")
    a.I(f"v_cvt_pk_bf16_f32 {v(var)}, {v(var)}, {v(var)}")
    a.I(f"v_lshlrev_b32 {v(var)}, 16, {v(var)}")
    a.I(f"v_sqrt_f32 {v(var)}, {v(var)}")
    s1 = T2 + 2
    a.I(f"v_and_b32 {v(s1)}, 3, {v(vL)}")
    a.I(f"v_lshrrev_b32 {v(vT)}, 3, {v(vL)}")
    a.I(f"v_lshl_add_u32 {v(s1)}, {v(s1)}, 3, {v(vT)}")
    a.I(f"v_cvt_pk_bf16_f32 {v(var)}, {v(var)}, {v(var)}")
    a.I(f"v_bfe_u32 {v(vT)}, {v(s1)}, 1, 3")
    a.I(f"v_bfe_u32 {v(T2+3)}, {v(vL)}, 2, 1")
    a.I(f"v_lshlrev_b32 {v(var)}, 16, {v(var)}")
    a.I(f"v_xor_b32 {v(vT)}, {v(vT)}, {v(T2+3)}")
    a.I(f"v_rcp_f32 {v(var)}, {v(var)}")
    a.I(f"v_lshlrev_b32 {v(vT)}, 4, {v(vT)}")
    a.I(f"v_lshl_add_u32 {v(vT)}, {v(s1)}, 7, {v(vT)}")
    a.I(f"s_add_u32 s44, s41, {XR + 16384}")
    a.I(f"v_add_u32 {v(vT)}, s44, {v(vT)}")
    a.I(f"ds_write_b128 {v(vT)}, {v(TX,4)}")
    a.I(f"v_and_b32 {v(vT)}, 31, {v(vL)}")
    a.I(f"v_lshlrev_b32 {v(vT)}, 1, {v(vT)}")
    a.I(f"v_lshrrev_b32 {v(T2+3)}, 5, {v(vL)}")
    a.I(f"v_lshl_add_u32 {v(vT)}, {v(T2+3)}, 8, {v(vT)}")
    a.I("s_lshl_b32 s44, s40, 11")
    a.I(f"v_add_u32 {v(vT)}, s44, {v(vT)}")
    A4 = [(gu, aa) for gu in range(2) for aa in range(2)]
    for k, (gu, aa) in enumerate(A4):
        a.I(f"v_cvt_pk_bf16_f32 {v(TW+k)}, {v(cs(gu,aa))}, {v(cs(gu,aa))}")
    for k, (gu, aa) in enumerate(A4):
        a.I(f"v_lshlrev_b32 {v(TW+k)}, 16, {v(TW+k)}")
    for k, (gu, aa) in enumerate(A4):
        a.I(f"v_sub_f32 {v(TW+k)}, {v(cs(gu,aa))}, {v(TW+k)}")
    for k, (gu, aa) in enumerate(A4):
        a.I(f"v_cvt_pk_bf16_f32 {v(TW+4+k)}, {v(cs(gu,aa))}, {v(TW+k)}")
    for k, (gu, aa) in enumerate(A4):
        a.I(f"v_and_b32 {v(TW+8+k)}, 0xffff0000, {v(TW+4+k)}")
    for k, (gu, aa) in enumerate(A4):
        a.I(f"v_sub_f32 {v(TW+k)}, {v(TW+k)}, {v(TW+8+k)}")
    for k, (gu, aa) in enumerate(A4):
        a.I(f"v_cvt_pk_bf16_f32 {v(TW+8+k)}, {v(TW+k)}, 0")
    for k, (gu, aa) in enumerate(A4):
        o = 32768 + gu * 1024 + aa * 512
        a.I(f"ds_write_b16 {v(vT)}, {v(TW+4+k)} offset:{o}")
        a.I(f"ds_write_b16_d16_hi {v(vT)}, {v(TW+4+k)} offset:{o+64}")
        a.I(f"ds_write_b16 {v(vT)}, {v(TW+8+k)} offset:{o+128}")
        a.I(f"ds_write_b16_d16_hi {v(vT)}, {v(TW+8+k)} offset:{o+192}")
    a.I("s_waitcnt lgkmcnt(0)")
    a.I("s_barrier")
    a.I("s_cmp_lg_u32 s16, 0")
    a.I("s_cbranch_scc1 k1_end")
    srd(a, 32, "s6", "s7", "0x10000000")
    a.I(f"v_mul_f32 {v(T2+3)}, {v(var)}, {v(var)}")
    a.I(f"v_mul_f32 {v(var)}, {f32hex(2.0/(2048*448))}, {v(var)}")
    a.I(f"v_lshlrev_b32 {v(s1)}, 2, {v(s1)}")
    a.I("s_lshl_b32 s44, s40, 7")
    a.I(f"v_add_u32 {v(vT)}, s44, {v(s1)}")
    a.I(f"v_add_u32 {v(vT)}, {RR}, {v(vT)}")
    a.I(f"ds_write_b32 {v(vT)}, {v(var)}")
    a.I("s_lshl_b32 s46, s14, 9")
    a.I("s_add_u32 s46, s46, s44")
    a.I(f"s_add_u32 s46, s46, {WS_R2}")
    a.I(f"buffer_store_dword {v(T2+3)}, {v(s1)}, s[32:35], s46 offen")
    a.I(f"v_lshrrev_b32 {v(vT)}, 5, {v(vL)}")
    a.I(f"v_lshlrev_b32 {v(vT)}, 4, {v(vT)}")
    a.I(f"s_add_u32 s44, s44, {RR}")
    a.I(f"v_add_u32 {v(vT)}, s44, {v(vT)}")
    a.I("s_waitcnt lgkmcnt(0)")
    for j in range(4):
        a.I(f"ds_read_b128 {v(TX+4*j,4)}, {v(vT)} offset:{32*j}")
    a.I(f"v_lshlrev_b32 {v(vT)}, 4, {v(vL)}")
    a.I("s_mul_i32 s44, s40, 6144")
    a.I(f"s_add_u32 s44, s44, {MP}")
    a.I(f"v_add_u32 {v(vT)}, s44, {v(vT)}")
    a.I("s_waitcnt lgkmcnt(0)")
    for r in range(0, 16, 2):
        a.I(f"v_pk_mul_f32 {v(COS+r,2)}, {v(COS+r,2)}, {v(TX+r,2)}")
        a.I(f"v_pk_mul_f32 {v(SIN+r,2)}, {v(SIN+r,2)}, {v(TX+r,2)}")
    OUT = 96
    for r in range(0, 16, 2):
        a.I(f"v_cvt_pk_bf16_f32 {v(OUT+r//2)}, {v(COS+r)}, {v(COS+r+1)}")
    a.I(f"ds_write_b128 {v(vT)}, {v(OUT,4)}")
    a.I(f"ds_write_b128 {v(vT)}, {v(OUT+4,4)} offset:1024")
    for r in range(0, 16, 2):
        a.I(f"v_cvt_pk_bf16_f32 {v(OUT+8+r//2)}, {v(SIN+r)}, {v(SIN+r+1)}")
    a.I(f"ds_write_b128 {v(vT)}, {v(OUT+8,4)} offset:2048")
    a.I(f"ds_write_b128 {v(vT)}, {v(OUT+12,4)} offset:3072")
    for r in range(0, 16, 2):
        a.I(f"v_cvt_pk_bf16_f32 {v(OUT+16+r//2)}, -{v(SIN+r)}, -{v(SIN+r+1)}")
    a.I(f"ds_write_b128 {v(vT)}, {v(OUT+16,4)} offset:4096")
    a.I(f"ds_write_b128 {v(vT)}, {v(OUT+20,4)} offset:5120")
    a.I("s_waitcnt lgkmcnt(0)")
    a.I("s_barrier")
    a.I("s_endpgm")


def gen_k1(a):
    a.I("s_cmp_ge_u32 s2, 256")
    a.I("s_cbranch_scc1 k1_end")
    a.I("s_load_dwordx2 s[4:5], s[0:1], 0")
    a.I("s_load_dwordx4 s[8:11], s[0:1], 32")
    a.I("s_load_dwordx2 s[6:7], s[0:1], 72")
    a.I("v_lshrrev_b32 v2, 6, v0")
    a.I("v_and_b32 v1, 63, v0")
    a.I("v_readfirstlane_b32 s17, v2")
    a.I("s_and_b32 s12, s2, 7")
    a.I("s_lshr_b32 s13, s2, 3")
    a.I("s_lshr_b32 s14, s12, 1")
    a.I("s_lshl_b32 s14, s14, 2")
    a.I("s_and_b32 s15, s13, 3")
    a.I("s_add_u32 s14, s14, s15")
    a.I("s_and_b32 s15, s12, 1")
    a.I("s_lshr_b32 s16, s13, 2")
    a.I("s_cmp_lt_u32 s17, 4")
    a.I("s_cbranch_scc1 k1_comp")
    k1_helper(a)
    a.L("k1_comp")
    a.I("v_mov_b32 v181, v1")
    a.I("s_waitcnt lgkmcnt(0)")
    a.I("s_cmp_eq_u32 s16, 0")
    a.I("s_cbranch_scc1 k1_compA")
    k1_compute(a, "B")
    a.L("k1_compA")
    k1_compute(a, "A")
    a.L("k1_end")
    a.I("s_endpgm")
```

```python
from asmlib import *
from layout import *
from gen_k1 import srd, MF32

MF16 = "v_mfma_f32_16x16x32_bf16"
K2_LDS = 147456
RED = 114688

def k2_b2(a):
    vL = 1; vT = 2; vT2 = 3; vWo = [4, 5]; vLane16 = 6; vRd = 7; vRed = 8
    ACC = 16
    FR = 48
    HR = 96
    a.I("s_sub_u32 s13, s13, 4")
    a.I("s_lshr_b32 s14, s12, 1")
    a.I("s_lshl_b32 s14, s14, 2")
    a.I("s_and_b32 s15, s13, 3")
    a.I("s_add_u32 s14, s14, s15")
    a.I("s_and_b32 s15, s12, 1")
    a.I("s_lshr_b32 s16, s13, 2")
    a.I("s_and_b32 s18, s17, 3")
    a.I("s_lshr_b32 s19, s17, 2")
    a.I(f"v_lshrrev_b32 {v(vT)}, 5, {v(vL)}")
    a.I(f"v_bfe_u32 {v(vT2)}, {v(vL)}, 2, 2")
    a.I(f"v_lshl_add_u32 {v(vT)}, {v(vT)}, 2, {v(vT2)}")
    a.I(f"v_mul_u32_u24 {v(vWo[0])}, 896, {v(vT)}")
    a.I(f"v_bfe_u32 {v(vT)}, {v(vL)}, 4, 1")
    a.I(f"v_lshl_add_u32 {v(vWo[0])}, {v(vT)}, 6, {v(vWo[0])}")
    a.I(f"v_and_b32 {v(vT)}, 3, {v(vL)}")
    a.I(f"v_lshl_add_u32 {v(vWo[0])}, {v(vT)}, 4, {v(vWo[0])}")
    a.I("s_lshl_b32 s20, s16, 7")
    a.I(f"v_add_u32 {v(vWo[0])}, s20, {v(vWo[0])}")
    a.I(f"v_add_u32 {v(vWo[1])}, {8*896-1024}, {v(vWo[0])}")
    a.I(f"v_lshlrev_b32 {v(vLane16)}, 4, {v(vL)}")
    a.I("s_mul_i32 s20, s15, 56")
    a.I("s_mul_i32 s21, s19, 28")
    a.I("s_add_u32 s20, s20, s21")
    a.I("s_add_u32 s22, s20, s18")
    a.I(f"s_mul_i32 s22, s22, {16*896}")
    a.I("s_add_u32 s23, s21, s18")
    a.I("s_lshl_b32 s23, s23, 11")
    a.I("s_lshl_b32 s24, s14, 2")
    a.I("s_add_u32 s24, s24, s18")
    a.I("s_mul_i32 s25, s24, 114688")
    a.I("s_lshl_b32 s26, s20, 10")
    a.I("s_add_u32 s25, s25, s26")
    a.I("s_waitcnt lgkmcnt(0)")
    srd(a, 28, "s8", "s9", 1792 * 896)
    srd(a, 32, "s6", "s7", "0x10000000")
    for c in range(7):
        a.I(f"s_mov_b32 m0, s23")
        a.I("s_add_u32 s23, s23, 8192")
        a.I(f"buffer_load_dwordx4 {v(vWo[0])}, s[28:31], s22 offen lds")
        a.I(f"buffer_load_dwordx4 {v(vWo[1])}, s[28:31], s22 offen offset:1024 lds")
        a.I(f"s_add_u32 s22, s22, {64*896}")
        for i in range(4):
            a.I(f"buffer_load_dwordx4 {v(HR+16*c+4*i,4)}, {v(vLane16)}, s[32:35], s25 offen offset:{i*1024}")
        a.I("s_add_u32 s25, s25, 4096")
    a.I(f"v_lshrrev_b32 {v(vT)}, 5, {v(vL)}")
    a.I(f"v_lshlrev_b32 {v(vRd)}, 9, {v(vT)}")
    a.I(f"v_bfe_u32 {v(vT)}, {v(vL)}, 2, 2")
    a.I(f"v_lshl_add_u32 {v(vRd)}, {v(vT)}, 6, {v(vRd)}")
    a.I(f"v_bfe_u32 {v(vT)}, {v(vL)}, 4, 1")
    a.I(f"v_lshl_add_u32 {v(vRd)}, {v(vT)}, 5, {v(vRd)}")
    a.I(f"v_and_b32 {v(vT)}, 1, {v(vL)}")
    a.I(f"v_lshl_add_u32 {v(vRd)}, {v(vT)}, 4, {v(vRd)}")
    a.I(f"v_bfe_u32 {v(vT)}, {v(vL)}, 1, 1")
    a.I(f"v_lshl_add_u32 {v(vRd)}, {v(vT)}, 3, {v(vRd)}")
    a.I("s_mul_i32 s26, s19, 57344")
    a.I(f"v_add_u32 {v(vRd)}, s26, {v(vRd)}")
    for c in range(7):
        a.I(f"s_waitcnt vmcnt({6*(6-c)})")
        a.I("s_barrier")
        for st in range(4):
            for ct in range(2):
                for j in range(2):
                    a.I(f"ds_read_b64_tr_b16 {v(FR+8*st+4*ct+2*j,2)}, {v(vRd)} offset:{(4*c+st)*2048 + j*1024 + ct*256}")
        for st in range(4):
            a.I(f"s_waitcnt lgkmcnt({12-4*st})")
            for ct in range(2):
                C = "0" if (c == 0 and st == 0) else v(ACC + 16*ct, 16)
                a.I(f"{MF32} {v(ACC+16*ct,16)}, {v(FR+8*st+4*ct,4)}, {v(HR+16*c+4*st,4)}, {C}")
    a.I("s_lshl_b32 s26, s17, 12")
    a.I(f"s_add_u32 s26, s26, {RED}")
    a.I(f"v_add_u32 {v(vRed)}, s26, {v(vLane16)}")
    a.I("s_xor_b32 s26, s17, 4")
    a.I("s_lshl_b32 s26, s26, 12")
    a.I(f"s_add_u32 s26, s26, {RED}")
    a.I(f"v_add_u32 {v(vT)}, s26, {v(vLane16)}")
    a.I("s_lshl_b32 s27, s15, 6")
    a.I("s_add_u32 s27, s27, s24")
    a.I("s_mul_i32 s27, s27, 14")
    a.I("s_lshl_b32 s26, s16, 1")
    a.I("s_add_u32 s27, s27, s26")
    a.I("s_add_u32 s27, s27, s19")
    a.I("s_lshl_b32 s27, s27, 11")
    a.I(f"s_add_u32 s27, s27, {WS_PB}")
    a.I("s_cmp_eq_u32 s19, 0")
    a.I("s_cbranch_scc1 k2b_kq0")
    for var, (give, keep) in enumerate(((0, 1), (1, 0))):
        if var == 1: a.L("k2b_kq0")
        g = ACC + 16 * give; k = ACC + 16 * keep
        for i in range(4):
            a.I(f"ds_write_b128 {v(vRed)}, {v(g+4*i,4)} offset:{i*1024}")
        a.I("s_waitcnt lgkmcnt(0)")
        a.I("s_barrier")
        for i in range(4):
            a.I(f"ds_read_b128 {v(FR+4*i,4)}, {v(vT)} offset:{i*1024}")
        for hf in range(2):
            a.I(f"s_waitcnt lgkmcnt({2-2*hf})")
            for i in range(8*hf, 8*hf+8, 2):
                a.I(f"v_pk_add_f32 {v(k+i,2)}, {v(k+i,2)}, {v(FR+i,2)}")
            for i in range(8*hf, 8*hf+8, 2):
                a.I(f"v_cvt_pk_bf16_f32 {v(FR+16+i//2)}, {v(k+i)}, {v(k+i+1)}")
            a.I(f"buffer_store_dwordx4 {v(FR+16+4*hf,4)}, {v(vLane16)}, s[32:35], s27 offen offset:{hf*1024}")
        a.I("s_endpgm")


def k2_amid(a):
    U = lambda sg, e, ri: 32 * sg + 8 * e + 4 * ri
    W = lambda sg, ri, tau: 64 + 32 * sg + 16 * ri + 4 * tau
    YF = 128; T = 128
    MAT = lambda c: 160 + 6 * c
    vL = 232; vT = 233; vT2 = 234; v15 = 235; vG = 236; vA = 237; vB = 238; vWr = [239, 240]; vSt = 241
    WSET = 17408; MATL = 69632
    a.I(f"v_mov_b32 {v(vL)}, v1")
    a.I("s_lshl_b32 s14, s12, 2")
    a.I("s_add_u32 s14, s14, s13")
    a.I("s_and_b32 s15, s14, 1")
    a.I("s_lshr_b32 s14, s14, 1")
    a.I("s_and_b32 s16, s14, 1")
    a.I("s_mul_i32 s18, s15, 7")
    a.I("s_add_u32 s18, s18, s17")
    a.I(f"v_and_b32 {v(v15)}, 15, {v(vL)}")
    a.I(f"v_lshrrev_b32 {v(vG)}, 4, {v(vL)}")
    a.I(f"v_lshlrev_b32 {v(vT)}, 12, {v(vG)}")
    a.I(f"v_lshl_add_u32 {v(vT)}, {v(v15)}, 4, {v(vT)}")
    a.I("s_lshl_b32 s19, s14, 17")
    a.I("s_lshl_b32 s20, s18, 8")
    a.I("s_add_u32 s19, s19, s20")
    a.I(f"s_add_u32 s19, s19, {WS_Y}")
    a.I("s_sub_u32 s20, 0, s14")
    a.I("s_cmp_eq_u32 s14, 0")
    a.I("s_cselect_b32 s20, 16, s20")
    a.I("s_cmp_ge_u32 s17, 4")
    a.I("s_cselect_b32 s20, s20, s14")
    a.I("s_and_b32 s21, s17, 1")
    a.I("s_lshl_b32 s22, s21, 10")
    a.I("s_add_u32 s20, s20, s22")
    a.I("s_mul_i32 s22, s15, 224")
    a.I("s_lshl_b32 s23, s16, 1")
    a.I("s_sub_u32 s22, s22, s23")
    a.I("s_lshr_b32 s23, s17, 1")
    a.I(f"s_mul_i32 s23, s23, {WSET}")
    a.I(f"s_mul_i32 s24, s21, {8*1088}")
    a.I("s_add_u32 s23, s23, s24")
    a.I(f"v_lshlrev_b32 {v(vA)}, 5, {v(vG)}")
    a.I(f"v_add_u32 {v(vA)}, s20, {v(vA)}")
    a.I(f"v_lshlrev_b32 {v(vB)}, 4, {v(v15)}")
    a.I(f"v_add_u32 {v(vB)}, s22, {v(vB)}")
    a.I("s_waitcnt lgkmcnt(0)")
    srd(a, 32, "s6", "s7", "0x10000000")
    a.I("s_bitcmp1_b32 s17, 1")
    a.I("s_cselect_b32 s28, s38, s36")
    a.I("s_cselect_b32 s29, s39, s37")
    a.I("s_mov_b32 s30, 921600")
    a.I("s_mov_b32 s31, 0x20000")
    for sg in range(2):
        for e in range(4):
            a.I(f"buffer_load_dwordx4 {v(YF+16*sg+4*e,4)}, {v(vT)}, s[32:35], s19 offen")
            a.I("s_add_u32 s19, s19, 16384")
    for i in range(8):
        a.I(f"v_and_b32 {v(vT2)}, 2047, {v(vA)}")
        a.I(f"v_mad_u32_u24 {v(vT2)}, {v(vT2)}, s40, {v(vB)}")
        a.I("s_mov_b32 m0, s23")
        a.I(f"v_add_u32 {v(vA)}, 128, {v(vA)}")
        a.I(f"buffer_load_dwordx4 {v(vT2)}, s[28:31], 0 offen lds")
        a.I("s_add_u32 s23, s23, 1088")
    a.I("s_and_b32 s20, s17, 3")
    for which in range(2):
        if which == 0:
            a.I("s_cmp_lt_u32 s17, 4")
            a.I("s_cselect_b32 s21, 1, 4")
            a.I("s_cselect_b32 s22, 0, s20")
            a.I("s_cselect_b32 s23, 16, 4")
            a.I("s_cselect_b32 s24, s20, 0")
            a.I(f"s_cselect_b32 s25, {f32hex(4.0)}, 1.0")
            a.I("s_mul_i32 s26, s17, 1536")
        else:
            a.I("s_mov_b32 s21, 4"); a.I("s_mov_b32 s22, s20"); a.I("s_mov_b32 s23, 4"); a.I("s_mov_b32 s24, 0")
            a.I("s_mov_b32 s25, 1.0")
            a.I("s_add_u32 s26, s20, 8")
            a.I("s_mul_i32 s26, s26, 1536")
        a.I(f"v_mul_u32_u24 {v(vA)}, s21, {v(v15)}")
        a.I(f"v_add_u32 {v(vA)}, s22, {v(vA)}")
        a.I(f"v_mul_u32_u24 {v(vB)}, s23, {v(vG)}")
        a.I(f"v_add_u32 {v(vB)}, s24, {v(vB)}")
        a.I(f"v_cvt_f32_u32 {v(vA)}, {v(vA)}")
        a.I(f"v_cvt_f32_u32 {v(vB)}, {v(vB)}")
        a.I(f"v_mul_f32 {v(vA)}, {f32hex(1/64)}, {v(vA)}")
        a.I(f"v_mul_f32 {v(vB)}, {v(vA)}, {v(vB)}")
        if which == 1:
            a.I("s_cmp_eq_u32 s14, 0")
            a.I("s_cselect_b32 s27, 0.5, 0")
            a.I(f"s_cselect_b32 s41, 0.5, {f32hex(0.25)}")
            a.I(f"v_fma_f32 {v(vB)}, {v(vA)}, s27, {v(vB)}")
            a.I(f"v_add_f32 {v(vB)}, s41, {v(vB)}")
        a.I(f"v_mul_f32 {v(vA)}, s25, {v(vA)}")
        for q in range(4):
            a.I(f"v_fract_f32 {v(q)}, {v(vB)}")
            if q < 3: a.I(f"v_add_f32 {v(vB)}, {v(vA)}, {v(vB)}")
        for q in range(4):
            a.I(f"v_cos_f32 {v(4+q)}, {v(q)}")
            a.I(f"v_sin_f32 {v(8+q)}, {v(q)}")
        a.I(f"v_cvt_pk_bf16_f32 v14, v4, v5")
        a.I(f"v_cvt_pk_bf16_f32 v15, v6, v7")
        a.I(f"v_cvt_pk_bf16_f32 v12, -v8, -v9")
        a.I(f"v_cvt_pk_bf16_f32 v13, -v10, -v11")
        a.I(f"v_cvt_pk_bf16_f32 v16, v8, v9")
        a.I(f"v_cvt_pk_bf16_f32 v17, v10, v11")
        a.I(f"s_add_u32 s26, s26, {MATL}")
        a.I(f"v_lshlrev_b32 {v(vT)}, 4, {v(vL)}")
        a.I(f"v_add_u32 {v(vT)}, s26, {v(vT)}")
        a.I(f"v_lshlrev_b32 {v(vT2)}, 3, {v(vL)}")
        a.I(f"v_add_u32 {v(vT2)}, s26, {v(vT2)}")
        a.I(f"ds_write_b128 {v(vT)}, v[12:15]")
        a.I(f"ds_write_b64 {v(vT2)}, v[16:17] offset:1024")
    a.I(f"v_subrev_u32 {v(vT)}, s26, {v(vT)}")
    a.I(f"v_subrev_u32 {v(vT2)}, s26, {v(vT2)}")
    a.I(f"v_add_u32 {v(vT)}, {MATL}, {v(vT)}")
    a.I(f"v_add_u32 {v(vT2)}, {MATL}, {v(vT2)}")
    a.I("s_waitcnt lgkmcnt(0)")
    a.I("s_barrier")
    for c in range(12):
        a.I(f"ds_read_b128 {v(MAT(c),4)}, {v(vT)} offset:{c*1536}")
        a.I(f"ds_read_b64 {v(MAT(c)+4,2)}, {v(vT2)} offset:{c*1536+1024}")
    for i in range(64, 128, 2):
        a.I(f"v_mov_b64 {v(i,2)}, 0")
    a.I(f"v_mul_u32_u24 {v(vWr[0])}, 1088, {v(vG)}")
    a.I(f"v_lshl_add_u32 {v(vWr[0])}, {v(v15)}, 1, {v(vWr[0])}")
    a.I("s_lshl_b32 s20, s17, 4")
    a.I("s_add_u32 s20, s20, s16")
    a.I("s_lshl_b32 s20, s20, 1")
    a.I(f"v_add_u32 {v(vWr[0])}, s20, {v(vWr[0])}")
    a.I(f"v_add_u32 {v(vWr[1])}, {2*WSET}, {v(vWr[0])}")
    a.I(f"v_lshlrev_b32 {v(vSt)}, 15, {v(v15)}")
    a.I(f"v_lshl_add_u32 {v(vSt)}, {v(vG)}, 4, {v(vSt)}")
    a.I("s_lshl_b32 s19, s14, 11")
    a.I("s_lshl_b32 s20, s18, 6")
    a.I("s_add_u32 s19, s19, s20")
    a.I(f"s_add_u32 s19, s19, {WS_YC}")
    a.I("s_cmp_eq_u32 s14, 0")
    a.I("s_cselect_b32 s42, 0, 1.0")
    a.I("s_mov_b32 s43, s42")
    a.I("s_waitcnt vmcnt(8) lgkmcnt(0)")
    for sg in range(2):
        for e in range(4):
            y = v(YF + 16 * sg + 4 * e, 4)
            a.I(f"{MF16} {v(U(sg,e,0),4)}, {v(MAT(e)+2,4)}, {y}, 0")
            a.I(f"{MF16} {v(U(sg,e,1),4)}, {v(MAT(e),4)}, {y}, 0")
    a.I("s_waitcnt vmcnt(0)")
    a.I("s_barrier")
    a.I("s_cmp_eq_u32 s18, 7")
    a.I("s_cselect_b32 s20, 1, 0")
    a.I("s_cmp_eq_u32 s15, 0")
    a.I("s_cselect_b32 s20, s20, 0")
    a.I("s_cmp_lg_u32 s20, 0")
    a.I("s_cbranch_scc1 k2_end")
    for sg in range(2):
        for tau in range(4):
            for ri in range(2):
                for i in range(4):
                    a.I(f"ds_read_u16_d16_hi {v(W(sg,ri,tau)+i)}, {v(vWr[sg])} offset:{ri*WSET + tau*4352 + i*256}")
    def padd(d, x, y, neg=False):
        for o in (0, 2):
            m = " neg_lo:[0,1] neg_hi:[0,1]" if neg else ""
            a.I(f"v_pk_add_f32 {v(d+o,2)}, {v(x+o,2)}, {v(y+o,2)}{m}")
    def bfly(R, sign):
        ta, tb, tc, td = T, T + 8, T + 16, T + 24
        for ri in range(2):
            padd(ta + 4*ri, R(0, ri), R(2, ri))
            padd(tb + 4*ri, R(0, ri), R(2, ri), True)
            padd(tc + 4*ri, R(1, ri), R(3, ri))
            padd(td + 4*ri, R(1, ri), R(3, ri), True)
        for ri in range(2):
            padd(R(0, ri), ta + 4*ri, tc + 4*ri)
            padd(R(2, ri), ta + 4*ri, tc + 4*ri, True)
        m, pz = (1, 3) if sign < 0 else (3, 1)
        padd(R(m, 0), tb, td + 4)
        padd(R(m, 1), tb + 4, td, True)
        padd(R(pz, 0), tb, td + 4, True)
        padd(R(pz, 1), tb + 4, td)
    bfly(lambda e, ri: U(0, e, ri), -1)
    bfly(lambda e, ri: U(1, e, ri), -1)
    a.I("s_waitcnt lgkmcnt(0)")
    for tau in range(4):
        for o in (0, 2):
            t = T + 8 * (o // 2) + 16 * (tau & 1)
            for sg in range(2):
                xr, xi = U(sg, tau, 0) + o, U(sg, tau, 1) + o
                wr, wi = W(sg, 0, tau) + o, W(sg, 1, tau) + o
                a.I(f"v_pk_mul_f32 {v(t+4*sg,2)}, {v(xr,2)}, {v(wr,2)}")
                a.I(f"v_pk_mul_f32 {v(t+4*sg+2,2)}, {v(xr,2)}, {v(wi,2)}")
            for sg in range(2):
                xr, xi = U(sg, tau, 0) + o, U(sg, tau, 1) + o
                wr, wi = W(sg, 0, tau) + o, W(sg, 1, tau) + o
                a.I(f"v_pk_fma_f32 {v(t+4*sg,2)}, {v(xi,2)}, {v(wi,2)}, {v(t+4*sg,2)} neg_lo:[0,1,0] neg_hi:[0,1,0]")
                a.I(f"v_pk_fma_f32 {v(t+4*sg+2,2)}, {v(xi,2)}, {v(wr,2)}, {v(t+4*sg+2,2)}")
            for ri in range(2):
                qa, qb = t + 2 * ri, t + 4 + 2 * ri
                a.I(f"v_pk_fma_f32 {v(U(0,tau,ri)+o,2)}, {v(qb,2)}, s[42:43], {v(qa,2)}")
                a.I(f"v_pk_fma_f32 {v(U(1,tau,ri)+o,2)}, {v(qa,2)}, s[42:43], {v(qb,2)} neg_lo:[0,0,1] neg_hi:[0,0,1]")
    AF = 64
    OD = 96
    for sg in range(2):
        bfly(lambda e, ri: U(sg, e, ri), +1)
        for e in range(4):
            d = AF + 16 * sg + 4 * e
            a.I(f"v_cvt_pk_bf16_f32 {v(d)}, {v(U(sg,e,0))}, {v(U(sg,e,0)+1)}")
            a.I(f"v_cvt_pk_bf16_f32 {v(d+1)}, {v(U(sg,e,0)+2)}, {v(U(sg,e,0)+3)}")
            a.I(f"v_cvt_pk_bf16_f32 {v(d+2)}, -{v(U(sg,e,1))}, -{v(U(sg,e,1)+1)}")
            a.I(f"v_cvt_pk_bf16_f32 {v(d+3)}, -{v(U(sg,e,1)+2)}, -{v(U(sg,e,1)+3)}")
        for e in range(4):
            d = AF + 16 * sg + 4 * e
            M = MAT(4 + 4 * sg + e)
            a.I(f"{MF16} {v(U(sg,e,0),4)}, {v(d,4)}, {v(M+2,4)}, 0")
            a.I(f"{MF16} {v(U(sg,e,1),4)}, {v(d,4)}, {v(M,4)}, 0")
    for sg in range(2):
        a.I(f"s_add_u32 s20, s19, {sg*1024}")
        for e in range(4):
            d = OD + 16 * sg + 4 * e
            for ri in range(2):
                a.I(f"v_cvt_pk_bf16_f32 {v(d+2*ri)}, {v(U(sg,e,ri))}, {v(U(sg,e,ri)+1)}")
                a.I(f"v_cvt_pk_bf16_f32 {v(d+2*ri+1)}, {v(U(sg,e,ri)+2)}, {v(U(sg,e,ri)+3)}")
            a.I(f"buffer_store_dwordx4 {v(d,4)}, {v(vSt)}, s[32:35], s20 offen")
            if e < 3: a.I("s_add_u32 s20, s20, 524288")
    a.I("s_endpgm")


def gen_k2(a):
    a.I("s_cmp_ge_u32 s2, 256")
    a.I("s_cbranch_scc1 k2_end")
    a.I("s_load_dwordx2 s[8:9], s[0:1], 48")
    a.I("s_load_dwordx2 s[6:7], s[0:1], 72")
    a.I("s_load_dwordx4 s[36:39], s[0:1], 8")
    a.I("v_lshrrev_b32 v2, 6, v0")
    a.I("v_and_b32 v1, 63, v0")
    a.I("v_readfirstlane_b32 s17, v2")
    a.I("s_and_b32 s12, s2, 7")
    a.I("s_lshr_b32 s13, s2, 3")
    a.I("s_movk_i32 s40, 450")
    a.I("s_cmp_lt_u32 s13, 4")
    a.I("s_cbranch_scc1 k2_amid")
    k2_b2(a)
    a.L("k2_amid")
    k2_amid(a)
    a.L("k2_end")
    a.I("s_endpgm")
```

```python
from asmlib import *
from layout import *
from gen_k1 import srd, MF32

K3_GRID = 224
K3_BLOCK = 256
YL = 57344
GB = 59392
K3_LDS = GB + 2 * 29696

def gen_k3(a):
    vL = 1; vT = 2; vT2 = 3; vYo = [4, 5]; vLane16 = 6; vYl = 7; vXo = 8; vYa = [9, 10, 11, 12]; vGa = 13; vR2 = 14; vS = 15
    ACC = 16; CI = 32; E = 48; XR_ = 56; PBR = 64; FY = 80; FG = 96; TB = 112
    a.I(f"s_cmp_ge_u32 s2, {K3_GRID}")
    a.I("s_cbranch_scc1 k3_end")
    a.I("s_load_dwordx2 s[4:5], s[0:1], 0")
    a.I("s_load_dwordx2 s[8:9], s[0:1], 56")
    a.I("s_load_dwordx2 s[6:7], s[0:1], 72")
    a.I("v_lshrrev_b32 v2, 6, v0")
    a.I("v_and_b32 v1, 63, v0")
    a.I("v_readfirstlane_b32 s17, v2")
    a.I("s_and_b32 s12, s2, 7")
    a.I("s_lshr_b32 s13, s2, 3")
    a.I("s_lshl_b32 s14, s12, 2")
    a.I("s_and_b32 s15, s13, 3")
    a.I("s_add_u32 s14, s14, s15")
    a.I("s_lshr_b32 s16, s13, 2")
    a.I("s_lshr_b32 s18, s17, 1")
    a.I("s_and_b32 s19, s17, 1")
    a.I("s_getpc_b64 s[24:25]")
    a.I("s_add_u32 s24, s24, tabG@rel32@lo+4")
    a.I("s_addc_u32 s25, s25, tabG@rel32@hi+12")
    a.I(f"s_mov_b32 s26, {14*29696}")
    a.I("s_mov_b32 s27, 0x20000")
    a.I(f"v_lshlrev_b32 {v(vLane16)}, 4, {v(vL)}")
    a.I("s_lshl_b32 s20, s16, 1")
    a.I("s_add_u32 s20, s20, s19")
    a.I("s_mul_i32 s21, s20, 29696")
    a.I("s_lshl_b32 s22, s18, 11")
    a.I("s_add_u32 s40, s21, s22")
    a.I("s_mul_i32 s41, s19, 29696")
    a.I("s_add_u32 s41, s41, s22")
    a.I(f"s_add_u32 s41, s41, {GB}")
    a.I(f"v_lshrrev_b32 {v(vT)}, 3, {v(vL)}")
    a.I("s_lshl_b32 s22, s17, 4")
    a.I(f"v_add_u32 {v(vT)}, s22, {v(vT)}")
    a.I(f"v_lshlrev_b32 {v(vYo[0])}, 10, {v(vT)}")
    a.I(f"v_lshrrev_b32 {v(vT)}, 4, {v(vL)}")
    a.I(f"v_and_b32 {v(vT2)}, 7, {v(vL)}")
    a.I(f"v_xor_b32 {v(vT)}, {v(vT)}, {v(vT2)}")
    a.I(f"v_lshlrev_b32 {v(vT)}, 4, {v(vT)}")
    a.I(f"v_xor_b32 {v(vT2)}, 64, {v(vT)}")
    a.I(f"v_add3_u32 {v(vYo[1])}, {v(vYo[0])}, {v(vT2)}, s23") if False else None
    a.I(f"v_add_u32 {v(vYo[1])}, {v(vYo[0])}, {v(vT2)}")
    a.I(f"v_add_u32 {v(vYo[1])}, {7*1024}, {v(vYo[1])}")
    a.I(f"v_add_u32 {v(vYo[0])}, {v(vYo[0])}, {v(vT)}")
    a.I("s_lshl_b32 s42, s14, 16")
    a.I(f"s_add_u32 s42, s42, {WS_YC}")
    a.I("s_lshl_b32 s43, s17, 11")
    a.I(f"v_lshrrev_b32 {v(vT)}, 1, {v(vL)}")
    a.I(f"v_lshlrev_b32 {v(vYl)}, 10, {v(vT)}")
    a.I(f"v_and_b32 {v(vT)}, 1, {v(vL)}")
    a.I(f"v_lshl_add_u32 {v(vYl)}, {v(vT)}, 4, {v(vYl)}")
    a.I("s_lshl_b32 s44, s14, 1")
    a.I("s_add_u32 s44, s44, s18")
    a.I("s_lshr_b32 s45, s44, 4")
    a.I("s_and_b32 s46, s44, 15")
    a.I("s_lshl_b32 s46, s46, 2")
    a.I("s_add_u32 s45, s45, s46")
    a.I(f"v_and_b32 {v(vT)}, 31, {v(vL)}")
    a.I(f"v_lshlrev_b32 {v(vR2)}, 2, {v(vT)}")
    a.I(f"v_lshlrev_b32 {v(vS)}, 6, {v(vT)}")
    a.I(f"v_add_u32 {v(vS)}, s45, {v(vS)}")
    a.I(f"v_mul_u32_u24 {v(vXo)}, 896, {v(vS)}")
    a.I(f"v_lshrrev_b32 {v(vT)}, 5, {v(vL)}")
    a.I(f"v_lshl_add_u32 {v(vXo)}, {v(vT)}, 4, {v(vXo)}")
    a.I("s_lshl_b32 s47, s20, 6")
    a.I("s_mul_i32 s48, s44, 14")
    a.I("s_add_u32 s48, s48, s20")
    a.I("s_lshl_b32 s48, s48, 11")
    a.I(f"s_add_u32 s48, s48, {WS_PB}")
    a.I(f"s_add_u32 s49, s48, {64*14*2048}")
    a.I("s_lshl_b32 s50, s44, 7")
    a.I(f"s_add_u32 s50, s50, {WS_R2}")
    a.I("s_waitcnt lgkmcnt(0)")
    srd(a, 28, "s6", "s7", "0x10000000")
    srd(a, 32, "s4", "s5", 2048 * 896)
    srd(a, 36, "s8", "s9", 2048 * 896)
    def chunk(b):
        a.I("s_mov_b32 m0, s43")
        a.I("s_add_u32 s43, s43, 8192")
        a.I(f"buffer_load_dwordx4 {v(vYo[0])}, s[28:31], s42 offen lds")
        a.I(f"buffer_load_dwordx4 {v(vYo[1])}, s[28:31], s42 offen offset:1024 lds")
        a.I("s_mov_b32 m0, s41")
        a.I("s_add_u32 s42, s42, 128")
        a.I(f"buffer_load_dwordx4 {v(vLane16)}, s[24:27], s40 offen lds")
        a.I(f"buffer_load_dwordx4 {v(vLane16)}, s[24:27], s40 offen offset:1024 lds")
        a.I("s_add_u32 s41, s41, 4096")
        a.I("s_add_u32 s40, s40, 4096")
    chunk(0); chunk(1)
    a.I(f"buffer_load_dword {v(vR2)}, {v(vR2)}, s[28:31], s50 offen")
    for hf in range(2):
        a.I(f"buffer_load_dwordx4 {v(PBR+4*hf,4)}, {v(vLane16)}, s[28:31], s48 offen offset:{1024*hf}")
        a.I(f"buffer_load_dwordx4 {v(PBR+8+4*hf,4)}, {v(vLane16)}, s[28:31], s49 offen offset:{1024*hf}")
        a.I(f"buffer_load_dwordx4 {v(XR_+4*hf,4)}, {v(vXo)}, s[32:35], s47 offen offset:{32*hf}")
    for b in range(2, 7): chunk(b)
    a.I("s_cmp_lt_u32 s17, 2")
    a.I("s_cbranch_scc1 k3_lastY")
    a.I("s_sub_u32 s41, s41, 2048")
    a.I("s_sub_u32 s40, s40, 2048")
    a.I("s_mov_b32 m0, s41")
    a.I("s_nop 0")
    a.I(f"buffer_load_dwordx4 {v(vLane16)}, s[24:27], s40 offen lds")
    a.I("s_branch k3_lastdone")
    a.L("k3_lastY")
    a.I("s_lshl_b32 s22, s17, 15")
    a.I("s_add_u32 s42, s42, s22")
    a.I("s_lshl_b32 s22, s17, 10")
    a.I(f"s_add_u32 m0, s22, {YL}")
    a.I("s_nop 0")
    a.I(f"buffer_load_dwordx4 {v(vYl)}, s[28:31], s42 offen lds")
    a.L("k3_lastdone")
    a.I(f"v_and_b32 {v(vT)}, 31, {v(vL)}")
    a.I(f"v_bfe_u32 {v(vT2)}, {v(vL)}, 1, 3")
    a.I(f"v_lshrrev_b32 {v(vYa[1])}, 5, {v(vL)}")
    a.I(f"v_xor_b32 {v(vT2)}, {v(vT2)}, {v(vYa[1])}")
    a.I(f"v_lshlrev_b32 {v(vT2)}, 4, {v(vT2)}")
    a.I(f"v_lshl_add_u32 {v(vYa[0])}, {v(vT)}, 7, {v(vT2)}")
    a.I("s_lshl_b32 s22, s18, 12")
    a.I(f"v_add_u32 {v(vYa[0])}, s22, {v(vYa[0])}")
    a.I(f"v_lshlrev_b32 {v(vYl)}, 5, {v(vT)}")
    a.I(f"v_lshl_add_u32 {v(vYl)}, {v(vYa[1])}, 4, {v(vYl)}")
    a.I("s_lshl_b32 s22, s18, 10")
    a.I(f"s_add_u32 s22, s22, {YL}")
    a.I(f"v_add_u32 {v(vYl)}, s22, {v(vYl)}")
    a.I(f"v_cvt_f32_u32 {v(vT)}, {v(vS)}")
    a.I(f"v_mul_f32 {v(vT)}, {f32hex(1/2048)}, {v(vT)}")
    a.I(f"v_cvt_f32_u32 {v(vT2)}, {v(vYa[1])}")
    a.I(f"v_add_f32 {v(vT2)}, {v(vT2)}, {v(vT2)}")
    a.I(f"v_mul_f32 {v(vT2)}, {v(vT2)}, {v(vT)}")
    for kk in (1, 2, 3):
        a.I(f"v_xor_b32 {v(vYa[kk])}, {32*kk}, {v(vYa[0])}")
    a.I("s_mul_i32 s22, s19, 29696")
    a.I(f"s_add_u32 s22, s22, {GB}")
    a.I(f"v_add_u32 {v(vGa)}, s22, {v(vLane16)}")
    for j in range(8):
        n = 4 * (j // 2) + (j % 2)
        a.I(f"v_mov_b32 {v(TB+j)}, {f32hex(float(n))}")
        a.I(f"v_fma_f32 {v(TB+j)}, {v(TB+j)}, {v(vT)}, {v(vT2)}")
        a.I(f"v_fract_f32 {v(TB+j)}, {v(TB+j)}")
    for j in range(8):
        a.I(f"v_cos_f32 {v(TB+8+j)}, {v(TB+j)}")
        a.I(f"v_sin_f32 {v(TB+j)}, {v(TB+j)}")
    a.I(f"v_lshlrev_b32 {v(vT)}, 31, {v(vL)}")
    a.I(f"v_or_b32 {v(vT)}, 1.0, {v(vT)}")
    a.I(f"v_cmp_gt_u32 vcc, 32, {v(vL)}")
    a.I(f"v_cndmask_b32 {v(TB)}, {v(TB)}, {v(vT)}, vcc")
    for j in range(8):
        a.I(f"v_cvt_pk_bf16_f32 {v(E+j)}, {v(TB+8+j)}, {v(TB+j)}")
    NTOT = 7 * 4 + 7 + 1
    def done_after(b):
        return 4 * (b + 1) + (7 if b >= 2 else 0)
    for b in range(7):
        a.I(f"s_waitcnt vmcnt({NTOT - done_after(b)})")
        a.I("s_barrier")
        for st in range(4):
            a.I(f"ds_read_b128 {v(FY+4*st,4)}, {v(vYa[st])} offset:{b*8192}")
            a.I(f"ds_read_b128 {v(FG+4*st,4)}, {v(vGa)} offset:{(4*b+st)*1024}")
        if b == 2:
            for i in range(8):
                a.I(f"v_lshlrev_b32 {v(TB)}, 16, {v(PBR+i)}")
                a.I(f"v_and_b32 {v(TB+1)}, 0xffff0000, {v(PBR+i)}")
                a.I(f"v_lshlrev_b32 {v(TB+2)}, 16, {v(PBR+8+i)}")
                a.I(f"v_and_b32 {v(TB+3)}, 0xffff0000, {v(PBR+8+i)}")
                a.I(f"v_lshlrev_b32 {v(CI+2*i)}, 16, {v(XR_+i)}")
                a.I(f"v_and_b32 {v(CI+2*i+1)}, 0xffff0000, {v(XR_+i)}")
                a.I(f"v_pk_add_f32 {v(TB,2)}, {v(TB,2)}, {v(TB+2,2)}")
                a.I(f"v_fmac_f32 {v(CI+2*i)}, {v(vR2)}, {v(TB)}")
                a.I(f"v_fmac_f32 {v(CI+2*i+1)}, {v(vR2)}, {v(TB+1)}")
        for st in range(4):
            a.I(f"s_waitcnt lgkmcnt({6-2*st})")
            C = "0" if (b == 0 and st == 0) else v(ACC, 16)
            a.I(f"{MF32} {v(ACC,16)}, {v(FY+4*st,4)}, {v(FG+4*st,4)}, {C}")
    a.I("s_waitcnt vmcnt(0)")
    a.I("s_barrier")
    a.I(f"ds_read_b128 {v(FY,4)}, {v(vYl)}")
    a.I(f"ds_read_b128 {v(FG,4)}, {v(vGa)} offset:{28*1024}")
    a.I("s_waitcnt lgkmcnt(0)")
    a.I(f"{MF32} {v(ACC,16)}, {v(FY,4)}, {v(FG,4)}, {v(ACC,16)}")
    for i in range(8):
        a.I(f"v_cvt_pk_bf16_f32 {v(TB+i)}, {v(ACC+2*i)}, {v(ACC+2*i+1)}")
    a.I(f"{MF32} {v(CI,16)}, {v(TB,4)}, {v(E,4)}, {v(CI,16)}")
    a.I(f"{MF32} {v(CI,16)}, {v(TB+4,4)}, {v(E+4,4)}, {v(CI,16)}")
    for hf in range(2):
        for i in range(4):
            a.I(f"v_cvt_pk_bf16_f32 {v(FY+4*hf+i)}, {v(CI+8*hf+2*i)}, {v(CI+8*hf+2*i+1)}")
        a.I(f"buffer_store_dwordx4 {v(FY+4*hf,4)}, {v(vXo)}, s[36:39], s47 offen offset:{32*hf}")
    a.L("k3_end")
    a.I("s_endpgm")
```

```python
import struct, math
WS_HF = 0
WS_Y  = 0x800000
WS_YC = 0xC00000
WS_PB = 0xE00000
WS_R2 = 0x1200000
def f32hex(x):
    return "0x%08x" % struct.unpack("<I", struct.pack("<f", x))[0]
def bf16bits(x):
    u = struct.unpack("<I", struct.pack("<f", x))[0]
    r = (u + 0x7fff + ((u >> 16) & 1)) >> 16
    return r & 0xffff
def s2_of_u(u): return (u >> 4) + 4 * (u & 15)
def t1_of_slot(sl):
    p = sl >> 1
    if sl & 1: return -p if p else 16
    return p
def perm23(n): return (n & 19) | ((n & 4) << 1) | ((n & 8) >> 1)

def tables():
    o = []
    for n in range(448):
        c = math.cos(2 * math.pi * n / 448)
        if n in (112, 336): c = 0.0
        o.append(f".set c448_{n}, 0x{bf16bits(c):04x}")
    o.append(".set c448_448, 0")
    o.append(".set c448_449, 0x3f00")
    o.append(".set c448_450, 0xbf00")
    o.append(""".altmacro
.macro e4q QA,QB,QC,QD
.quad c448_\\QA | (c448_\\QB << 16) | (c448_\\QC << 32) | (c448_\\QD << 48)
.endm
.p2align 8
tabF:
.set qd, 0
.rept 448
e4q 449, %((qd)%448), %((qd*2)%448), %((qd*3)%448)
.set qk, 4
.rept 55
e4q %((qd*qk)%448), %((qd*(qk+1))%448), %((qd*(qk+2))%448), %((qd*(qk+3))%448)
.set qk, qk+4
.endr
e4q %(449+(qd&1)), 448, 448, 448
.zero 56
.set qd, qd+1
.endr
.set qd, 0
.rept 448
.set qk, 0
.rept 56
e4q %((qd*qk+112)%448), %((qd*(qk+1)+112)%448), %((qd*(qk+2)+112)%448), %((qd*(qk+3)+112)%448)
.set qk, qk+4
.endr
.zero 64
.set qd, qd+1
.endr
.p2align 8
tabG:
.set qc, 0
.rept 14
.set qk, 0
.rept 56
.set qn, 0
.rept 32
.set qd, 32*qc + ((qn & 19) | ((qn & 4) << 1) | ((qn & 8) >> 1))
e4q %((qd*qk)%448), %((qd*(qk+1))%448), %((qd*(qk+2))%448), %((qd*(qk+3))%448)
e4q %((qd*qk+336)%448), %((qd*(qk+1)+336)%448), %((qd*(qk+2)+336)%448), %((qd*(qk+3)+336)%448)
.set qn, qn+1
.endr
.set qk, qk+4
.endr
.set qn, 0
.rept 32
e4q %(224*(qn&1)), 448, 448, 448
.zero 8
.set qn, qn+1
.endr
.zero 512
.set qc, qc+1
.endr
.noaltmacro""")
    return "\n".join(o) + "\n"
```

```python
import sys
from asmlib import *
from layout import *
import gen_k1
kernels = [("k1_kernel", gen_k1.gen_k1, 256, 512, gen_k1.K1_LDS, 256)]
try:
    import gen_k2
    kernels.append(("k2_kernel", gen_k2.gen_k2, 256, 512, gen_k2.K2_LDS, 256))
    import gen_k3
    kernels.append(("k3_kernel", gen_k3.gen_k3, gen_k3.K3_GRID, gen_k3.K3_BLOCK, gen_k3.K3_LDS, 256))
except ImportError as e:
    print("note:", e, file=sys.stderr)
out = []
for name, fn, grid, block, lds, nv in kernels:
    out.append(f"; @launch kernel={name} grid=({grid},1,1) block=({block},1,1) lds={lds}")
out.append('.amdgcn_target "amdgcn-amd-amdhsa--gfx950"')
out.append(".text")
bad = 0
for name, fn, grid, block, lds, nv in kernels:
    a = Asm()
    fn(a)
    bad += a.verify_edges()
    print(name, "instrs", sum(1 for i in a.ins if i.kind != "none"), "nops added", a.nops_added, file=sys.stderr)
    out.append(f".globl {name}\n.p2align 8\n.type {name},@function\n{name}:")
    out.append(a.text())
out.append('.section .rodata,"a"')
for name, fn, grid, block, lds, nv in kernels:
    out.append(f""".p2align 6
.amdhsa_kernel {name}
  .amdhsa_next_free_vgpr {nv}
  .amdhsa_next_free_sgpr 102
  .amdhsa_accum_offset {nv}
  .amdhsa_group_segment_fixed_size 0
  .amdhsa_kernarg_size 80
  .amdhsa_user_sgpr_count 2
  .amdhsa_user_sgpr_kernarg_segment_ptr 1
  .amdhsa_system_sgpr_workgroup_id_x 1
.end_amdhsa_kernel""")
out.append(tables())
dst = sys.argv[1] if len(sys.argv) > 1 else "parallel_sum__spectral_gfnet__glu_gated_bilinear__prompt.s"
open(dst, "w").write("\n".join(out))
assert bad == 0
```

```python
import re

def v(i, n=1):
    return f"v{i}" if n == 1 else f"v[{i}:{i+n-1}]"
def s(i, n=1):
    return f"s{i}" if n == 1 else f"s[{i}:{i+n-1}]"

TRANS = ("v_exp_f32", "v_log_f32", "v_rcp_f32", "v_rsq_f32", "v_sqrt_f32", "v_sin_f32", "v_cos_f32")

def _regs(tok):
    tok = tok.strip()
    tok = tok.lstrip("-").strip("|")
    m = re.fullmatch(r"([vs])(\d+)", tok)
    if m:
        return [(m.group(1), int(m.group(2)))]
    m = re.fullmatch(r"([vs])\[(\d+):(\d+)\]", tok)
    if m:
        return [(m.group(1), i) for i in range(int(m.group(2)), int(m.group(3)) + 1)]
    if tok == "vcc":
        return [("s", 106), ("s", 107)]
    if tok == "vcc_lo":
        return [("s", 106)]
    if tok == "vcc_hi":
        return [("s", 107)]
    if tok == "m0":
        return [("s", 124)]
    if tok == "exec":
        return [("s", 126), ("s", 127)]
    return []

class Ins:
    def __init__(self, text):
        self.text = text
        t = text.split(";")[0].strip()
        self.label = t.endswith(":")
        self.directive = t.startswith(".") or t == ""
        self.op = ""
        self.kind = "none"
        self.rd = set(); self.wr = set()
        self.srcC = set(); self.srcAB = set()
        self.states = 0
        self.dpp = False
        self.lds_dma = False
        self.store_data = set()
        if self.label or self.directive:
            return
        parts = t.split(None, 1)
        self.op = op = parts[0]
        rest = parts[1] if len(parts) > 1 else ""
        ops = []; cur = ""; depth = 0
        for ch in rest:
            if ch == "[": depth += 1
            if ch == "]": depth -= 1
            if ch == "," and depth == 0:
                ops.append(cur.strip()); cur = ""
            else:
                cur += ch
        if cur.strip(): ops.append(cur.strip())
        mods = ""
        if ops:
            last = ops[-1].split(None, 1)
            ops[-1] = last[0]
            mods = last[1] if len(last) > 1 else ""
        self.ops = ops; self.mods = mods
        self.states = 1
        R = lambda toks: set(r for tk in toks for r in _regs(tk))
        if op == "s_nop":
            self.kind = "nop"; self.states = int(ops[0]) + 1
        elif op.startswith("v_mfma"):
            self.kind = "mfma"
            self.passes = 8 if "32x32x16" in op else 4
            self.wr = R(ops[:1]); self.srcAB = R(ops[1:3]); self.srcC = R(ops[3:4])
            self.rd = self.srcAB | self.srcC
        elif op.startswith("v_"):
            self.kind = "valu"
            if op.startswith("v_permlane") and "swap" in op:
                self.wr = R(ops[:2]); self.rd = R(ops[:2])
            elif op.startswith("v_cmp"):
                self.wr = R(ops[:1]); self.rd = R(ops[1:])
            elif op.endswith("_co_u32") or "_co_" in op:
                self.wr = R(ops[:2]); self.rd = R(ops[2:])
            else:
                self.wr = R(ops[:1]); self.rd = R(ops[1:])
                if op.startswith(("v_dot2c", "v_fmac", "v_mac", "v_pk_fmac")) or "_dpp" in op:
                    self.rd |= R(ops[:1])
                if op.startswith("v_cndmask") and len(ops) == 3:
                    self.rd |= {("s", 106), ("s", 107)}
            self.dpp = ("_dpp" in op) or ("quad_perm" in mods) or ("row_" in mods)
            self.trans = op.replace("_e32", "").replace("_e64", "") in TRANS
            self.dot = op.startswith("v_dot")
        elif op.startswith("ds_"):
            self.kind = "ds"
            if op.startswith(("ds_read", "ds_bpermute", "ds_permute", "ds_swizzle")):
                self.wr = R(ops[:1]); self.rd = R(ops[1:])
            else:
                self.rd = R(ops)
        elif op.startswith(("buffer_", "global_")):
            self.kind = "vmem"
            allm = (mods + " ").split()
            if "lds" in allm:
                self.lds_dma = True
                self.rd = R(ops) | {("s", 124)}
            elif "load" in op:
                self.wr = R(ops[:1]); self.rd = R(ops[1:])
            else:
                self.rd = R(ops)
                if op.endswith(("x3", "x4")):
                    self.store_data = R(ops[:1]) if op.startswith("buffer_") else R(ops[1:2])
        elif op.startswith("s_"):
            self.kind = "salu"
            if op.startswith(("s_cmp", "s_cbranch", "s_branch", "s_waitcnt", "s_barrier", "s_endpgm", "s_setprio", "s_bitcmp", "s_sleep")):
                self.rd = R(ops)
            else:
                self.wr = R(ops[:1]); self.rd = R(ops[1:])
        else:
            raise ValueError("unknown op " + text)

def need(p, c):
    n = 0
    vw = {r for r in p.wr if r[0] == "v"}
    sw = {r for r in p.wr if r[0] == "s"}
    if p.kind == "valu":
        if c.kind == "mfma" and vw & c.rd: n = max(n, 2)
        if sw:
            if c.kind == "vmem" and sw & c.rd: n = max(n, 5)
            if c.kind == "valu" and sw & c.rd: n = max(n, 4 if c.op.startswith(("v_readlane", "v_writelane")) else 2)
            if ("s", 126) in sw and (c.kind == "mfma" or c.dpp): n = max(n, 5)
        if c.kind == "valu":
            if c.dpp and vw & c.rd: n = max(n, 2)
            if c.op.startswith(("v_readlane", "v_readfirstlane")) and vw & c.rd: n = max(n, 1)
            if c.op.startswith("v_permlane") and vw & c.rd: n = max(n, 2)
            if p.trans and vw & c.rd: n = max(n, 1)
        if p.trans and c.kind in ("ds", "vmem") and vw & c.rd: n = max(n, 1)
        if p.dot:
            if c.op == p.op:
                srcs = set(r for tk in c.ops[1:] for r in _regs(tk))
                if vw & srcs: n = max(n, 3)
            elif vw & (c.rd | c.wr): n = max(n, 3)
    if p.kind == "mfma":
        full = 12 if p.passes == 8 else 8
        if c.kind == "mfma":
            if vw & c.srcAB: n = max(n, full)
            if vw & c.srcC:
                if not (c.srcC == vw and c.passes == p.passes): n = max(n, 10 if p.passes == 8 else 6)
            elif vw & c.wr: n = max(n, full)
        elif c.kind in ("valu", "ds", "vmem"):
            if vw & (c.rd | c.wr): n = max(n, full)
            if c.kind == "valu" and p.srcC & c.wr: n = max(n, 7 if p.passes == 8 else 3)
    if p.kind == "salu" and ("s", 124) in sw and c.lds_dma: n = max(n, 1)
    if p.kind == "vmem" and p.store_data and (p.store_data & c.wr): n = max(n, 2)
    return n

class Asm:
    def __init__(self):
        self.ins = []
        self.nops_added = 0
    def raw(self, text):
        for ln in text.split("\n"):
            self.ins.append(Ins(ln))
    def I(self, text):
        for ln in text.strip().split("\n"):
            ln = ln.strip()
            if not ln: continue
            c = Ins(ln)
            if c.kind not in ("none",):
                dist = 0; req = 0
                for p in reversed(self.ins):
                    if p.kind == "none": continue
                    if p.op in ("s_branch", "s_endpgm"): break
                    r = need(p, c) - dist
                    if r > req: req = r
                    dist += p.states
                    if dist >= 14: break
                while req > 0:
                    k = min(req, 8)
                    self.ins.append(Ins(f"s_nop {k-1}")); req -= k; self.nops_added += k
            self.ins.append(c)
    STAMP = False
    kidx = 0
    def stamp(self, i):
        if Asm.STAMP:
            self.I(f"s_memrealtime s[{64+2*i}:{65+2*i}]")
            if i == 0: self.I("s_memtime s[98:99]")
    def stampc(self, i):
        if Asm.STAMP:
            self.I(f"s_memtime s[{64+2*i}:{65+2*i}]")
    def end(self, nst=12):
        if Asm.STAMP:
            self.I("s_waitcnt vmcnt(0)")
            self.stamp(nst - 1)
            self.I("s_memtime s[88:89]")
            self.I("s_getreg_b32 s90, hwreg(HW_REG_XCC_ID)")
            self.I("s_getreg_b32 s91, hwreg(HW_REG_HW_ID)")
            self.I("s_mov_b32 s92, s6"); self.I("s_mov_b32 s93, s7"); self.I("s_mov_b32 s94, 0x10000000"); self.I("s_mov_b32 s95, 0x20000")
            self.I(f"s_add_u32 s96, s2, {256*self.kidx}")
            self.I("s_lshl_b32 s96, s96, 3")
            self.I("s_add_u32 s96, s96, s17")
            self.I("s_lshl_b32 s96, s96, 6")
            self.I("s_add_u32 s96, s96, 0x2000000")
            self.I("s_waitcnt lgkmcnt(0)")
            self.I("v_mov_b32 v0, 0")
            for i in range(nst):
                self.I(f"v_mov_b32 v1, s{64+2*i}")
                self.I(f"buffer_store_dword v1, v0, s[92:95], s96 offen offset:{4*i}")
            for i, r in ((12, 90), (13, 98), (14, 88), (15, 91)):
                self.I(f"v_mov_b32 v1, s{r}")
                self.I(f"buffer_store_dword v1, v0, s[92:95], s96 offen offset:{4*i}")
        self.I("s_endpgm")
    def L(self, name):
        self.ins.append(Ins(name + ":"))
    def verify_edges(self):
        lab = {i.text.split(":")[0].strip(): k for k, i in enumerate(self.ins) if i.label}
        bad = 0
        for k, b in enumerate(self.ins):
            if b.op.startswith(("s_cbranch", "s_branch")):
                tgt = lab[b.ops[0]]
                pre = [p for p in self.ins[max(0, k - 40):k + 1] if p.kind != "none"]
                post = [c for c in self.ins[tgt:tgt + 40] if c.kind != "none"]
                d0 = 0
                for c in post:
                    dist = d0
                    for p in reversed(pre):
                        if need(p, c) > dist:
                            print("EDGE HAZARD:", p.text, "->", c.text, "dist", dist); bad += 1
                        dist += p.states
                        if dist >= 14: break
                    d0 += c.states
                    if d0 >= 14 or c.op in ("s_branch", "s_endpgm"): break
        return bad
    def text(self):
        return "\n".join(("" if (i.label or i.directive) else "  ") + i.text for i in self.ins) + "\n"
```

```python
from asmlib import *
from layout import *
import os
E = os.environ.get

MF32 = "v_mfma_f32_32x32x16_bf16"
NW = 6
XR = NW * 16384
NX = 3
K1_LDS = XR + NX * 16384
NPRE = 3

def srd(a, base, lo, hi, nrec):
    a.I(f"s_mov_b32 {s(base)}, {lo}")
    a.I(f"s_mov_b32 {s(base+1)}, {hi}")
    a.I(f"s_mov_b32 {s(base+2)}, {nrec}")
    a.I(f"s_mov_b32 {s(base+3)}, 0x20000")

vL = 181; vT = 182; vT2 = 183
VD = 250

def wsetup(a, typ, vWo):
    if typ == "B":
        a.I("s_mov_b32 s36, 3584")
        a.I("s_mul_i32 s37, s15, 7")
        a.I("s_add_u32 s37, s37, s16")
        a.I("s_sub_u32 s37, s37, 1")
        a.I("s_lshl_b32 s37, s37, 8")
        a.I("s_waitcnt lgkmcnt(0)")
        srd(a, 24, "s8", "s9", 448 * 3584)
        srd(a, 28, "s10", "s11", 448 * 3584)
        stride = 3584
    else:
        a.I("s_mov_b32 s36, 512")
        a.I("s_lshl_b32 s37, s15, 8")
        a.I("s_getpc_b64 s[24:25]")
        a.I("s_add_u32 s24, s24, tabF@rel32@lo+4")
        a.I("s_addc_u32 s25, s25, tabF@rel32@hi+12")
        a.I("s_mov_b32 s26, 229376")
        a.I("s_mov_b32 s27, 0x20000")
        a.I("s_add_u32 s28, s24, 229376")
        a.I("s_addc_u32 s29, s25, 0")
        a.I("s_mov_b32 s30, 229376")
        a.I("s_mov_b32 s31, 0x20000")
        a.I("s_waitcnt lgkmcnt(0)")
        stride = 512
    a.I(f"v_bfe_u32 {v(vT)}, {v(vL)}, 2, 2")
    a.I("s_lshl_b32 s38, s40, 3")
    a.I(f"v_add_u32 {v(vT)}, s38, {v(vT)}")
    a.I(f"v_mul_u32_u24 {v(vWo[0])}, s36, {v(vT)}")
    a.I(f"v_lshrrev_b32 {v(vT)}, 4, {v(vL)}")
    a.I(f"v_lshl_add_u32 {v(vWo[0])}, {v(vT)}, 6, {v(vWo[0])}")
    a.I(f"v_and_b32 {v(vT)}, 3, {v(vL)}")
    a.I(f"v_lshl_add_u32 {v(vWo[0])}, {v(vT)}, 4, {v(vWo[0])}")
    a.I(f"v_add_u32 {v(vWo[0])}, s37, {v(vWo[0])}")
    a.I(f"v_add_u32 {v(vWo[1])}, {4*stride-2048}, {v(vWo[0])}")
    a.I(f"s_mov_b32 s38, {32*stride}")
    a.I(f"s_mul_i32 s39, s51, {64*stride}")
    a.I(f"s_mov_b32 s50, {448*stride}")
    a.I("s_lshl_b32 s41, s40, 12")

def k1_compute(a, typ):
    P = "k1c" + typ
    acc = lambda q, gu: 32 * q + 16 * gu
    Xf = lambda b, q: 128 + 24 * b + 4 * q
    Wf = lambda b, gu: 128 + 24 * b + 16 + 4 * gu
    vXa = [176, 177, 178, 179]; vWa = 180
    MM = 184; vSt = 208

    def reads(buf, kk):
        st = (kk & 1) * 8192
        r = []
        r.append(f"ds_read_b64_tr_b16 {v(Wf(buf,0),2)}, {v(vWa)} offset:{st}")
        r.append(f"ds_read_b64_tr_b16 {v(Wf(buf,0)+2,2)}, {v(vWa)} offset:{st+2048}")
        r.append(f"ds_read_b128 {v(Xf(buf,0),4)}, {v(vXa[kk])}")
        r.append(f"ds_read_b64_tr_b16 {v(Wf(buf,1),2)}, {v(vWa)} offset:{st+1024}")
        r.append(f"ds_read_b64_tr_b16 {v(Wf(buf,1)+2,2)}, {v(vWa)} offset:{st+3072}")
        for q in (1, 2, 3):
            r.append(f"ds_read_b128 {v(Xf(buf,q),4)}, {v(vXa[kk])} offset:{q*4096}")
        return r
    def mfmas(buf):
        m = []
        for q in range(4):
            for gu in range(2):
                A, B = (Wf(buf, gu), Xf(buf, q)) if typ == "B" else (Xf(buf, q), Wf(buf, gu))
                if E("X_M16"):
                    c0 = acc(q,gu) + 8*buf
                    m.append(f"v_mfma_f32_16x16x32_bf16 {v(c0,4)}, {v(A,4)}, {v(B,4)}, {v(c0,4)}\nv_mfma_f32_16x16x32_bf16 {v(c0+4,4)}, {v(B,4)}, {v(A,4)}, {v(c0+4,4)}")
                else:
                    m.append(f"{MF32} {v(acc(q,gu),16)}, {v(A,4)}, {v(B,4)}, {v(acc(q,gu),16)}")
        return m

    vWo = [210, 211]
    wsetup(a, typ, vWo)
    NT = 0
    if E("X_PF"):
        a.I("s_cmp_lt_u32 s18, 2")
        a.I("s_cselect_b32 s44, s24, s28")
        a.I("s_cselect_b32 s45, s25, s29")
        a.I("s_mov_b32 s46, s26")
        a.I("s_mov_b32 s47, 0x20000")
        a.I(f"v_and_b32 {v(vT)}, {int(E('X_TM','31'))}, {v(vL)}")
        a.I(f"v_mul_u32_u24 {v(vSt)}, s36, {v(vT)}")
        a.I("s_and_b32 s48, s18, 1")
        a.I("s_lshl_b32 s48, s48, 7")
        a.I("s_add_u32 s48, s48, s37")
        a.I("s_mul_i32 s49, s40, s38")
        a.I("s_add_u32 s49, s49, s39")
        a.I("s_sub_u32 s52, s49, s50")
        a.I("s_cmp_ge_u32 s49, s50")
        a.I("s_cselect_b32 s49, s52, s49")
        a.I("s_add_u32 s48, s48, s49")
    a.I(f"v_and_b32 {v(vT)}, 31, {v(vL)}")
    a.I(f"v_bfe_u32 {v(vT2)}, {v(vL)}, 1, 3")
    a.I(f"v_lshrrev_b32 {v(vXa[1])}, 5, {v(vL)}")
    a.I(f"v_xor_b32 {v(vT2)}, {v(vT2)}, {v(vXa[1])}")
    a.I(f"v_lshlrev_b32 {v(vT2)}, 4, {v(vT2)}")
    a.I(f"v_lshl_add_u32 {v(vXa[0])}, {v(vT)}, 7, {v(vT2)}")
    a.I(f"v_add_u32 {v(vXa[0])}, {XR}, {v(vXa[0])}")
    a.I(f"v_lshlrev_b32 {v(vWa)}, 12, {v(vXa[1])}")
    a.I(f"s_lshl_b32 s20, s40, 8")
    a.I(f"v_add_u32 {v(vWa)}, s20, {v(vWa)}")
    a.I(f"v_bfe_u32 {v(vT)}, {v(vL)}, 2, 2")
    a.I(f"v_lshl_add_u32 {v(vWa)}, {v(vT)}, 6, {v(vWa)}")
    a.I(f"v_bfe_u32 {v(vT)}, {v(vL)}, 4, 1")
    a.I(f"v_lshl_add_u32 {v(vWa)}, {v(vT)}, 5, {v(vWa)}")
    a.I(f"v_and_b32 {v(vT)}, 3, {v(vL)}")
    a.I(f"v_lshl_add_u32 {v(vWa)}, {v(vT)}, 3, {v(vWa)}")
    for kk in (1, 2, 3):
        a.I(f"v_xor_b32 {v(vXa[kk])}, {32*kk}, {v(vXa[0])}")
    for i in range(0, 128, 2):
        a.I(f"v_mov_b64 {v(i,2)}, 0")
    if E("X_TSLEEP"): a.I(f"s_sleep {E('X_TSLEEP')}")
    if E("X_PF"):
        a.I(f"buffer_load_dword {v(VD)}, {v(vSt)}, s[44:47], s48 offen")
    if typ == "A":
        a.I("s_getpc_b64 s[44:45]")
        a.I("s_add_u32 s44, s44, tabM@rel32@lo+4")
        a.I("s_addc_u32 s45, s45, tabM@rel32@hi+12")
        a.I("s_mov_b32 s46, 6144")
        a.I("s_mov_b32 s47, 0x20000")
        a.I("s_movk_i32 s32, 4096")
        a.I("s_lshl_b32 s33, s14, 12")
        a.I("s_lshl_b32 s48, s15, 11")
        a.I("s_add_u32 s33, s33, s48")
        a.I("s_lshl_b32 s48, s40, 9")
        a.I("s_add_u32 s33, s33, s48")
        a.I(f"s_add_u32 s33, s33, {WS_Y}")
    else:
        a.I("s_lshl_b32 s33, s37, 5")
        a.I("s_lshl_b32 s48, s40, 11")
        a.I("s_add_u32 s33, s33, s48")
        a.I(f"s_mul_i32 s48, s14, {4*114688}")
        a.I("s_add_u32 s33, s33, s48")
    a.I(f"s_mov_b32 s22, {(-(NW-1)*16384) & 0xffffffff}")
    a.I("s_mov_b32 s23, 16384")
    assert NW == 2 * NX
    a.I(f"s_mov_b32 s34, {(-(NX-1)*16384) & 0xffffffff}")
    a.I("s_mov_b32 s19, 0")
    a.I("s_mov_b32 s20, 0")
    a.I(f"v_lshlrev_b32 {v(vSt)}, 4, {v(vL)}")
    a.stamp(1)
    a.I("s_barrier")
    for st in range(NPRE):
        for gu in range(2):
            a.I(f"s_add_u32 m0, s41, {st*16384 + gu*1024}")
            a.I("s_nop 0")
            for aa in range(2):
                a.I(f"buffer_load_dwordx4 {v(vWo[aa])}, s[{24+4*gu}:{27+4*gu}], s39 offen offset:{aa*2048} lds")
        a.I("s_add_u32 s39, s39, s38")
        a.I("s_cmp_eq_u32 s39, s50")
        a.I("s_cselect_b32 s39, 0, s39")
    NM = 0
    if typ == "A":
        NM = 6
        for j in range(4):
            a.I(f"buffer_load_dwordx4 {v(MM+4*j,4)}, {v(vSt)}, s[44:47], 0 offen offset:{1024*j}")
        for j in range(2):
            a.I(f"buffer_load_dwordx4 {v(MM+16+4*j,4)}, {v(vSt)}, s[44:47], s32 offen offset:{1024*j}")
        a.I(f"v_lshrrev_b32 {v(vSt)}, 5, {v(vL)}")
        a.I(f"v_lshlrev_b32 {v(vSt)}, 18, {v(vSt)}")
        a.I(f"v_and_b32 {v(vT)}, 31, {v(vL)}")
        a.I(f"v_lshl_add_u32 {v(vSt)}, {v(vT)}, 4, {v(vSt)}")
    srd(a, 24, "s6", "s7", "0x10000000")
    a.I("s_mov_b32 s28, s33")
    a.I("s_setprio 2")
    a.I(f"s_waitcnt vmcnt({8+NM})")
    a.stamp(9)
    a.I("s_barrier")
    a.stamp(2)
    if not E("X_TS"): a.stampc(5)
    for r in reads(0, 0): a.I(r)
    a.raw(".p2align 6") if E("X_ALIGN") else None
    a.L(P + "_loop")
    for kk in range(4):
        buf = kk & 1
        m = mfmas(buf)
        r = reads(buf ^ 1, (kk + 1) & 3)
        a.I("s_waitcnt lgkmcnt(5)")
        a.I(m[0])
        if Asm.STAMP and E("X_TS"):
            if kk == 0:
                a.I("s_memtime s[54:55]"); a.I("s_memrealtime s[56:57]")
            if kk == 2:
                a.I("s_lshr_b32 s54, s54, 2"); a.I("s_and_b32 s54, s54, 0xffff"); a.I("s_lshl_b32 s56, s56, 16"); a.I("s_or_b32 s54, s54, s56")
                a.I("s_lshl_b32 m0, s19, 1"); a.I("s_nop 0"); a.I("s_movreld_b32 s72, s54")
        if kk & 1:
            a.I("s_add_u32 s20, s20, 1")
            a.I(f"s_cmp_eq_u32 s20, {NW}")
            a.I("s_cselect_b32 s20, 0, s20")
            a.I("s_cselect_b32 s21, s22, s23")
            a.I(f"v_add_u32 {v(vWa)}, s21, {v(vWa)}")
            if kk == 3:
                a.I("s_cselect_b32 s21, s34, s23")
                a.I(f"v_add_u32 {v(vXa[0])}, s21, {v(vXa[0])}")
        a.I("s_waitcnt lgkmcnt(3)")
        a.I(m[1])
        if kk == 1:
            a.I(f"s_waitcnt vmcnt({4+NM})")
            a.I("s_barrier")
        if kk == 3:
            a.I("s_cmp_eq_u32 s19, 6")
            a.I(f"s_cbranch_scc1 {P}_nb{kk}")
            a.I(f"s_waitcnt vmcnt({NM})")
            a.I("s_barrier")
            a.L(f"{P}_nb{kk}")
        a.I(r[0]); a.I(r[1])
        a.I("s_waitcnt lgkmcnt(4)")
        a.I(m[2])
        a.I(r[2])
        a.I(m[3])
        a.I(r[3]); a.I(r[4])
        a.I("s_waitcnt lgkmcnt(6)")
        a.I(m[4])
        a.I(r[5])
        if kk == 3:
            for k2 in (1, 2, 3):
                a.I(f"v_add_u32 {v(vXa[k2])}, s21, {v(vXa[k2])}")
        a.I(m[5])
        a.I(r[6])
        a.I("s_waitcnt lgkmcnt(7)")
        a.I(m[6])
        a.I(r[7])
        if kk == 3:
            a.I("s_add_u32 s19, s19, 1")
            a.I("s_cmp_lt_u32 s19, 7")
        a.I(m[7])
    a.I(f"s_cbranch_scc1 {P}_loop")
    a.stamp(3)
    if not E("X_TS"): a.stampc(6)
    if typ == "B":
        for q in range(4):
            g, u = acc(q, 0), acc(q, 1)
            for i in range(0, 16, 2):
                a.I(f"v_pk_mul_f32 {v(g+i,2)}, {v(g+i,2)}, {v(u+i,2)}")
            for i in range(0, 16, 2):
                a.I(f"v_cvt_pk_bf16_f32 {v(u+i//2)}, {v(g+i)}, {v(g+i+1)}")
            a.I(f"buffer_store_dwordx4 {v(u,4)}, {v(vSt)}, s[24:27], s28 offen")
            a.I(f"buffer_store_dwordx4 {v(u+4,4)}, {v(vSt)}, s[24:27], s28 offen offset:1024")
            if q < 3: a.I("s_add_u32 s28, s28, 114688")
    else:
        Zb = lambda b: 128 + 16 * b
        M = MM
        a.I("s_waitcnt vmcnt(0) lgkmcnt(0)")
        def cvt(q):
            for gu in range(2):
                for i in range(0, 16, 2):
                    a.I(f"v_cvt_pk_bf16_f32 {v(Zb(q&1)+8*gu+i//2)}, {v(acc(q,gu)+i)}, {v(acc(q,gu)+i+1)}")
        cvt(0)
        for q in range(4):
            z = Zb(q & 1)
            yr, yi = acc(q, 0), acc(q, 1)
            mm = [
                f"{MF32} {v(yr,16)}, {v(M,4)}, {v(z,4)}, 0",
                f"{MF32} {v(yi,16)}, {v(M,4)}, {v(z+8,4)}, 0",
                f"{MF32} {v(yr,16)}, {v(M+4,4)}, {v(z+4,4)}, {v(yr,16)}",
                f"{MF32} {v(yi,16)}, {v(M+4,4)}, {v(z+12,4)}, {v(yi,16)}",
                f"{MF32} {v(yr,16)}, {v(M+8,4)}, {v(z+8,4)}, {v(yr,16)}",
                f"{MF32} {v(yi,16)}, {v(M+16,4)}, {v(z,4)}, {v(yi,16)}",
                f"{MF32} {v(yr,16)}, {v(M+12,4)}, {v(z+12,4)}, {v(yr,16)}",
                f"{MF32} {v(yi,16)}, {v(M+20,4)}, {v(z+4,4)}, {v(yi,16)}",
            ]
            nxt = []
            if q < 3:
                for gu in range(2):
                    for i in range(0, 16, 2):
                        nxt.append(f"v_cvt_pk_bf16_f32 {v(Zb((q+1)&1)+8*gu+i//2)}, {v(acc(q+1,gu)+i)}, {v(acc(q+1,gu)+i+1)}")
            else:
                for i in range(8):
                    t = 212 + 4 * i
                    nxt.append(f"v_cvt_pk_bf16_f32 {v(t)}, {v(acc(0,0)+i)}, {v(acc(1,0)+i)}")
                    nxt.append(f"v_cvt_pk_bf16_f32 {v(t+2)}, {v(acc(0,1)+i)}, {v(acc(1,1)+i)}")
            for j, x in enumerate(mm):
                a.I(x)
                for y in nxt[2*j:2*j+2]: a.I(y)
        for i in range(8, 16):
            t = 128 + 4 * (i & 7)
            a.I(f"v_cvt_pk_bf16_f32 {v(t)}, {v(acc(0,0)+i)}, {v(acc(1,0)+i)}")
            a.I(f"v_cvt_pk_bf16_f32 {v(t+2)}, {v(acc(0,1)+i)}, {v(acc(1,1)+i)}")
        for i in range(16):
            t = (212 if i < 8 else 128) + 4 * (i & 7)
            a.I(f"v_cvt_pk_bf16_f32 {v(t+1)}, {v(acc(2,0)+i)}, {v(acc(3,0)+i)}")
            a.I(f"v_cvt_pk_bf16_f32 {v(t+3)}, {v(acc(2,1)+i)}, {v(acc(3,1)+i)}")
            a.I(f"buffer_store_dwordx4 {v(t,4)}, {v(vSt)}, s[24:27], s28 offen")
            if i < 15:
                a.I(f"s_add_u32 s28, s28, {(5 if i % 4 == 3 else 1) * 65536}")
    if not E("X_TS"): a.stamp(4)
    a.end()


def k1_helper(a):
    RX = 32
    NPU = int(E("X_NPU", "5"))
    LO = lambda b: 184 + 16 * b if b < 4 else 144
    vWo = [4, 5]; vXo = [6, 7, 8, 9]; vN = 10
    SM = [12, 13, 14, 15]; SQ = [16, 17, 18, 19]; RC = 20
    TM = 160
    ops = []
    def wait_for(tag):
        k = max(i for i, t in enumerate(ops) if t == tag)
        return len(ops) - 1 - k
    a.I("s_lshl2_add_u32 s44, s40, s42")
    a.I("s_mul_i32 s44, s44, 896")
    a.I("s_add_u32 s49, s44, 896")
    a.I("s_lshl_b32 s48, s51, 7")
    a.I("s_add_u32 s48, s48, s44")
    a.I(f"v_lshrrev_b32 {v(vT)}, 3, {v(vL)}")
    a.I(f"v_mul_u32_u24 {v(vXo[0])}, 57344, {v(vT)}")
    a.I(f"v_lshrrev_b32 {v(vT)}, 4, {v(vL)}")
    a.I(f"v_and_b32 {v(vT2)}, 7, {v(vL)}")
    a.I(f"v_xor_b32 {v(vT)}, {v(vT)}, {v(vT2)}")
    a.I(f"v_lshlrev_b32 {v(vT)}, 4, {v(vT)}")
    a.I(f"v_xor_b32 {v(vT2)}, 64, {v(vT)}")
    a.I(f"v_add_u32 {v(vXo[1])}, {v(vXo[0])}, {v(vT2)}")
    a.I(f"v_add_u32 {v(vXo[0])}, {v(vXo[0])}, {v(vT)}")
    a.I(f"v_add_u32 {v(vXo[1])}, {8*57344}, {v(vXo[1])}")
    a.I(f"v_add_u32 {v(vXo[2])}, {16*57344}, {v(vXo[0])}")
    a.I(f"v_add_u32 {v(vXo[3])}, {16*57344}, {v(vXo[1])}")
    a.I("s_waitcnt lgkmcnt(0)")
    if E("X_SB"): a.stamp(1)
    srd(a, 20, "s4", "s5", 2048 * 896)
    def xload(b):
        for i in range(4):
            a.I(f"buffer_load_dwordx4 {v(RX+16*b+4*i,4)}, {v(vXo[i])}, s[20:23], s48 offen")
            ops.append(f"x{b}")
        a.I("s_add_u32 s48, s48, 128")
        a.I("s_cmp_eq_u32 s48, s49")
        a.I("s_cselect_b32 s48, s44, s48")
    NUP = int(E("X_NUP", "4"))
    for b in range(NUP): xload(b)
    a.I("s_cmp_eq_u32 s16, 0")
    a.I("s_cbranch_scc1 k1_selA")
    wsetup(a, "B", vWo)
    a.I("s_branch k1_sel_done")
    a.L("k1_selA")
    wsetup(a, "A", vWo)
    a.L("k1_sel_done")
    a.I(f"s_mul_i32 s52, s38, {NPRE}")
    a.I("s_add_u32 s39, s39, s52")
    a.I("s_sub_u32 s52, s39, s50")
    a.I("s_cmp_ge_u32 s39, s50")
    a.I("s_cselect_b32 s39, s52, s39")
    a.I(f"v_lshlrev_b32 {v(vN)}, 4, {v(vL)}")
    a.I(f"s_add_u32 s46, s41, {XR}")
    a.I(f"v_add_u32 {v(vN)}, s46, {v(vN)}")
    for r in range(12, 20, 2): a.I(f"v_mov_b64 {v(r,2)}, 0")
    a.I("s_mov_b32 s45, 0x3f803f80")
    a.I("s_mov_b32 s46, 0xffff0000")
    nW = [NPRE]
    def wpieces():
        st = nW[0]; nW[0] += 1
        L = []
        for gu in range(2):
            for aa in range(2):
                pre = [f"s_add_u32 m0, s41, {(st % NW)*16384 + gu*1024}"] if aa == 0 else []
                post = ["s_add_u32 s39, s39, s38", "s_cmp_eq_u32 s39, s50", "s_cselect_b32 s39, 0, s39"] if (gu, aa) == (1, 1) and not E("X_WFIX") else []
                L.append((pre, f"buffer_load_dwordx4 {v(vWo[aa])}, s[{24+4*gu}:{27+4*gu}], s39 offen offset:{aa*2048}{E('X_WMOD','')} lds", post, f"w{st}"))
        return L
    def emit_piece(pc):
        for x in pc[0]: a.I(x)
        a.I(pc[1]); ops.append(pc[3])
        for x in pc[2]: a.I(x)
    def wissue():
        for pc in wpieces(): emit_piece(pc)
    def interleave(valu, pieces):
        n = len(pieces)
        step = len(valu) / max(n, 1)
        k = 0
        for j, x in enumerate(valu):
            while k < n and j >= k * step:
                emit_piece(pieces[k]); k += 1
            a.I(x)
        while k < n:
            emit_piece(pieces[k]); k += 1
    prefetch_setup(a)
    if not E("X_SB"): a.stamp(1)
    for b in range(7):
        a.I(f"s_waitcnt vmcnt({wait_for(f'x{b}')})")
        if E("X_SB"): a.stamp(2 + b)
        if b + NUP < 7: xload(b + NUP)
        if b == max(0, 6 - NUP): a.I("s_barrier")
        for d in range(4):
            for i in range(4):
                r = RX + 16 * b + 4 * i + d
                a.I(f"v_dot2c_f32_bf16 {v(SM[i])}, s45, {v(r)}")
                a.I(f"v_dot2c_f32_bf16 {v(SQ[i])}, {v(r)}, {v(r)}")
        if b < NPU:
            for d in range(16):
                r = RX + 16 * b + d
                a.I(f"v_lshlrev_b32 {v(LO(b)+d)}, 16, {v(r)}")
                a.I(f"v_and_b32 {v(r)}, s46, {v(r)}")
    a.stamp(9)
    for pat in ("quad_perm:[1,0,3,2]", "quad_perm:[2,3,0,1]", "row_half_mirror"):
        for r in SM + SQ:
            a.I(f"v_add_f32_dpp {v(r)}, {v(r)}, {v(r)} {pat} row_mask:0xf bank_mask:0xf")
    II = (0, 1, 2, 3)
    for i in II: a.I(f"v_mul_f32 {v(SM[i])}, {f32hex(1/448)}, {v(SM[i])}")
    for i in II: a.I(f"v_mul_f32 {v(SQ[i])}, {f32hex(1/448)}, {v(SQ[i])}")
    for i in II: a.I(f"v_fma_f32 {v(SQ[i])}, -{v(SM[i])}, {v(SM[i])}, {v(SQ[i])}")
    for i in II: a.I(f"v_max_f32 {v(SQ[i])}, 0, {v(SQ[i])}")
    for i in II: a.I(f"v_cvt_pk_bf16_f32 {v(SQ[i])}, {v(SM[i])}, {v(SQ[i])}")
    for i in II: a.I(f"v_lshlrev_b32 {v(SM[i])}, 16, {v(SQ[i])}")
    for i in II: a.I(f"v_and_b32 {v(SQ[i])}, s46, {v(SQ[i])}")
    for i in II: a.I(f"v_add_f32 {v(SQ[i])}, {f32hex(1e-5)}, {v(SQ[i])}")
    for i in II: a.I(f"v_cvt_pk_bf16_f32 {v(SQ[i])}, {v(SQ[i])}, {v(SQ[i])}")
    for i in II: a.I(f"v_and_b32 {v(SQ[i])}, s46, {v(SQ[i])}")
    for i in II: a.I(f"v_sqrt_f32 {v(SQ[i])}, {v(SQ[i])}")
    for i in II: a.I(f"v_cvt_pk_bf16_f32 {v(SQ[i])}, {v(SQ[i])}, {v(SQ[i])}")
    for i in II: a.I(f"v_and_b32 {v(SQ[i])}, s46, {v(SQ[i])}")
    for i in II: a.I(f"v_rcp_f32 {v(RC+2*i)}, {v(SQ[i])}")
    for i in II: a.I(f"v_mul_f32 {v(RC+2*i+1)}, -{v(SM[i])}, {v(RC+2*i)}")
    def norml(b, i):
        src = RX + 16 * b + 4 * i; rc = RC + 2 * i
        lo = LO(b) + 4 * i if b < NPU else TM + 4 * i
        L = []
        if b >= NPU:
            for d in range(4):
                L.append(f"v_lshlrev_b32 {v(lo+d)}, 16, {v(src+d)}")
                L.append(f"v_and_b32 {v(src+d)}, s46, {v(src+d)}")
        for d in range(4):
            L.append(f"v_fma_f32 {v(lo+d)}, {v(lo+d)}, {v(rc)}, {v(rc+1)}")
            L.append(f"v_fma_f32 {v(src+d)}, {v(src+d)}, {v(rc)}, {v(rc+1)}")
        for d in range(4):
            L.append(f"v_cvt_pk_bf16_f32 {v(src+d)}, {v(lo+d)}, {v(src+d)}")
        if not (E("X_NODS") and b): L.append(f"ds_write_b128 {v(vN)}, {v(src,4)} offset:{(b%NX)*16384+1024*i}")
        return L
    def norm(b, i):
        for x in norml(b, i): a.I(x)
    for i in II: norm(0, i)
    a.I(f"s_waitcnt lgkmcnt(0)")
    a.stamp(10)
    a.I("s_barrier")
    DBL = [int(x) for x in E("X_DBL", "").split(",") if x]
    HB = Asm.STAMP and E("X_HB")
    if HB:
        for r in (68, 70, 72, 74): a.I(f"s_mov_b32 s{r}, 0")
        a.I("s_memtime s[54:55]")
    for n in range(13):
        pcs = []
        if E("X_NODMA"): ops.extend([f"w{n+1}"])
        elif n in DBL: pcs = wpieces() + wpieces()
        elif nW[0] < 14: pcs = wpieces()
        PF0 = int(E("X_PF0", "10"))
        if PF0 <= n < PF0 + 3 and not E("X_NOPF2"): pcs = pcs + prefetch_piece(n - PF0)
        if HB: a.I("s_memtime s[56:57]")
        vl = []
        if n < 12:
            for i in (0, 1): vl += norml(n // 2 + 1, 2 * (n & 1) + i)
        interleave(vl, pcs)
        if HB: a.I("s_memtime s[58:59]")
        if n + 1 >= NPRE: a.I(f"s_waitcnt vmcnt({wait_for(f'w{n+1}')})" + (" lgkmcnt(0)" if n & 1 else ""))
        elif n & 1: a.I("s_waitcnt lgkmcnt(0)")
        if HB: a.I("s_memtime s[60:61]")
        if n == 12 and not E("X_SB"): a.stamp(7)
        a.I("s_barrier")
        if HB:
            a.I("s_memtime s[62:63]")
            a.I("s_waitcnt lgkmcnt(0)")
            lo, hi = map(int, E("X_HB").split(","))
            for k, r in enumerate((68, 70, 72, 74)):
                if lo <= n <= hi:
                    a.I(f"s_sub_u32 s53, s{56+2*k}, s{54+2*k}")
                    a.I(f"s_add_u32 s{r}, s{r}, s53")
            a.I("s_memtime s[54:55]")
    if not E("X_SB"): a.stamp(8)
    a.end()


def prefetch_setup(a):
    a.I("s_load_dwordx2 s[32:33], s[0:1], 48")
    a.I("s_load_dwordx4 s[56:59], s[0:1], 8")
    a.I("s_lshl2_add_u32 s55, s13, s40")
    a.I("s_mul_i32 s53, s55, 6272")
    a.I("s_mul_i32 s52, s15, 802816")
    a.I("s_add_u32 s53, s53, s52")
    a.I(f"v_min_u32 v28, 48, {v(vL)}")
    a.I("v_lshlrev_b32 v28, 7, v28")
    a.I("s_mov_b32 s34, 1605632")
    a.I("s_mov_b32 s35, 0x20000")
    a.I(f"v_lshrrev_b32 v29, 5, {v(vL)}")
    a.I("s_lshl_b32 s52, s12, 1")
    a.I("v_add_u32 v29, s52, v29")
    a.I(f"v_sub_u32 v11, 0, v29")
    a.I("v_cmp_eq_u32 vcc, 0, v29")
    a.I("v_cndmask_b32 v11, v11, 16, vcc")
    a.I(f"v_and_b32 {v(vT)}, 16, {v(vL)}")
    a.I(f"v_cmp_eq_u32 vcc, 0, {v(vT)}")
    a.I("v_cndmask_b32 v29, v11, v29, vcc")
    a.I("s_lshr_b32 s52, s55, 1")
    a.I("s_lshl_b32 s52, s52, 5")
    a.I("v_add_u32 v29, s52, v29")
    a.I("v_and_b32 v29, 2047, v29")
    a.I("v_mul_u32_u24 v29, 450, v29")
    a.I(f"v_and_b32 {v(vT)}, 15, {v(vL)}")
    a.I(f"v_lshlrev_b32 {v(vT)}, 7, {v(vT)}")
    a.I(f"v_min_u32 {v(vT)}, 446, {v(vT)}")
    a.I(f"v_add_u32 v29, v29, {v(vT)}")
    a.I("v_and_b32 v29, -4, v29")
    a.I("s_getpc_b64 s[60:61]")
    a.I("s_add_u32 s60, s60, tabG@rel32@lo+4")
    a.I("s_addc_u32 s61, s61, tabG@rel32@hi+12")
    a.I(f"s_mov_b32 s62, {14*29696}")
    a.I("s_mov_b32 s63, 0x20000")
    a.I(f"v_min_u32 v30, 25, {v(vL)}")
    a.I("v_lshlrev_b32 v30, 7, v30")
    a.I("s_mul_i32 s54, s55, 3328")
    a.I("v_mov_b32 v31, 0")
    a.I("s_waitcnt lgkmcnt(0)")
    a.I("s_bitcmp1_b32 s55, 0")
    a.I("s_cselect_b32 s56, s58, s56")
    a.I("s_cselect_b32 s57, s59, s57")
    a.I("s_mov_b32 s58, 921600")
    a.I("s_mov_b32 s59, 0x20000")
    a.I("s_lshl_b32 s55, s55, 7")

def prefetch_piece(k):
    if k == 0: return [([], f"buffer_load_dword {v(VD)}, v28, s[32:35], s53 offen", [], "t")]
    if k == 1: return [([], f"buffer_load_dword {v(VD)}, v29, s[56:59], 0 offen", [], "t")]
    if k == 2: return [([], f"buffer_load_dword {v(VD)}, v30, s[60:63], s54 offen", [], "t"),
        (["s_getpc_b64 s[20:21]", "s_add_u32 s20, s20, k2_kernel@rel32@lo+4", "s_addc_u32 s21, s21, k2_kernel@rel32@hi+12", "s_mov_b32 s22, code_end-k2_kernel"],
         f"buffer_load_dword {v(VD)}, v31, s[20:23], s55 offen", [], "t")]


def gen_k1(a):
    a.I("s_cmp_ge_u32 s2, 256")
    a.I("s_cbranch_scc1 k1_end")
    a.stamp(0)
    a.I("s_load_dwordx2 s[4:5], s[0:1], 0")
    a.I("s_load_dwordx4 s[8:11], s[0:1], 32")
    a.I("s_load_dwordx2 s[6:7], s[0:1], 72")
    a.I("v_lshrrev_b32 v2, 6, v0")
    a.I(f"v_and_b32 {v(vL)}, 63, v0")
    a.I("v_readfirstlane_b32 s17, v2")
    a.I("s_and_b32 s12, s2, 7")
    a.I("s_lshr_b32 s13, s2, 3")
    a.I("s_lshr_b32 s14, s12, 1")
    a.I("s_and_b32 s18, s13, 3")
    a.I("s_lshl_b32 s42, s14, 4")
    a.I("s_add_u32 s42, s42, s18")
    a.I("s_lshl2_add_u32 s14, s18, s14")
    a.I("s_and_b32 s15, s12, 1")
    a.I("s_lshr_b32 s16, s13, 2")
    a.I("s_and_b32 s40, s17, 3")
    a.I(f"s_mul_i32 s51, s18, {int(E('X_ROTR','0'))}")
    a.I("s_add_u32 s51, s51, s16")
    a.I("s_sub_u32 s52, s51, 7")
    a.I("s_cmp_ge_u32 s51, 7")
    a.I("s_cselect_b32 s51, s52, s51")
    a.I("s_cmp_ge_u32 s17, 4")
    a.I("s_cbranch_scc1 k1_comp")
    k1_helper(a)
    a.L("k1_comp")
    a.I("s_getpc_b64 s[32:33]")
    a.I("s_add_u32 s32, s32, k1_kernel@rel32@lo+4")
    a.I("s_addc_u32 s33, s33, k1_kernel@rel32@hi+12")
    a.I("s_mov_b32 s34, k1_end-k1_kernel")
    a.I("s_mov_b32 s35, 0x20000")
    a.I("v_and_b32 v3, 255, v0")
    a.I("v_lshlrev_b32 v3, 7, v3")
    a.I(f"buffer_load_dword {v(VD)}, v3, s[32:35], 0 offen")
    a.I("s_cmp_eq_u32 s16, 0")
    a.I("s_cbranch_scc1 k1_compA")
    k1_compute(a, "B")
    a.L("k1_compA")
    k1_compute(a, "A")
    a.L("k1_end")
    a.I("s_endpgm")
```

```python
from asmlib import *
from layout import *
from gen_k1 import srd, MF32

MF16 = "v_mfma_f32_16x16x32_bf16"
K2_LDS = 147456
RED = 114688

def k2_b2(a):
    vL = 1; vT = 2; vT2 = 3; vWo = [4, 5]; vLane16 = 6; vRd = 7; vRed = 8
    ACC = 16
    FR = 48
    HR = 96
    a.I("s_sub_u32 s13, s13, 4")
    a.I("s_lshr_b32 s14, s12, 1")
    a.I("s_and_b32 s15, s13, 3")
    a.I("s_lshl2_add_u32 s14, s15, s14")
    a.I("s_and_b32 s15, s12, 1")
    a.I("s_lshr_b32 s16, s13, 2")
    a.I("s_and_b32 s18, s17, 3")
    a.I("s_lshr_b32 s19, s17, 2")
    a.I(f"v_lshrrev_b32 {v(vT)}, 5, {v(vL)}")
    a.I(f"v_bfe_u32 {v(vT2)}, {v(vL)}, 2, 2")
    a.I(f"v_lshl_add_u32 {v(vT)}, {v(vT)}, 2, {v(vT2)}")
    a.I(f"v_mul_u32_u24 {v(vWo[0])}, 896, {v(vT)}")
    a.I(f"v_bfe_u32 {v(vT)}, {v(vL)}, 4, 1")
    a.I(f"v_lshl_add_u32 {v(vWo[0])}, {v(vT)}, 6, {v(vWo[0])}")
    a.I(f"v_and_b32 {v(vT)}, 3, {v(vL)}")
    a.I(f"v_lshl_add_u32 {v(vWo[0])}, {v(vT)}, 4, {v(vWo[0])}")
    a.I("s_lshl_b32 s20, s16, 7")
    a.I(f"v_add_u32 {v(vWo[0])}, s20, {v(vWo[0])}")
    a.I(f"v_add_u32 {v(vWo[1])}, {8*896-1024}, {v(vWo[0])}")
    a.I(f"v_lshlrev_b32 {v(vLane16)}, 4, {v(vL)}")
    a.I("s_mul_i32 s20, s15, 56")
    a.I("s_mul_i32 s21, s19, 28")
    a.I("s_add_u32 s20, s20, s21")
    a.I("s_add_u32 s22, s20, s18")
    a.I(f"s_mul_i32 s22, s22, {16*896}")
    a.I("s_add_u32 s23, s21, s18")
    a.I("s_lshl_b32 s23, s23, 11")
    a.I("s_lshl_b32 s24, s14, 2")
    a.I("s_add_u32 s24, s24, s18")
    a.I("s_mul_i32 s25, s24, 114688")
    a.I("s_lshl_b32 s26, s20, 10")
    a.I("s_add_u32 s25, s25, s26")
    a.I("s_waitcnt lgkmcnt(0)")
    srd(a, 28, "s8", "s9", 1792 * 896)
    srd(a, 32, "s6", "s7", "0x10000000")
    for c in range(7):
        a.I(f"s_mov_b32 m0, s23")
        a.I("s_add_u32 s23, s23, 8192")
        a.I(f"buffer_load_dwordx4 {v(vWo[0])}, s[28:31], s22 offen lds")
        a.I(f"buffer_load_dwordx4 {v(vWo[1])}, s[28:31], s22 offen offset:1024 lds")
        a.I(f"s_add_u32 s22, s22, {64*896}")
        for i in range(4):
            a.I(f"buffer_load_dwordx4 {v(HR+16*c+4*i,4)}, {v(vLane16)}, s[32:35], s25 offen offset:{i*1024}")
        a.I("s_add_u32 s25, s25, 4096")
    a.stamp(1)
    a.I(f"v_lshrrev_b32 {v(vT)}, 5, {v(vL)}")
    a.I(f"v_lshlrev_b32 {v(vRd)}, 9, {v(vT)}")
    a.I(f"v_bfe_u32 {v(vT)}, {v(vL)}, 2, 2")
    a.I(f"v_lshl_add_u32 {v(vRd)}, {v(vT)}, 6, {v(vRd)}")
    a.I(f"v_bfe_u32 {v(vT)}, {v(vL)}, 4, 1")
    a.I(f"v_lshl_add_u32 {v(vRd)}, {v(vT)}, 5, {v(vRd)}")
    a.I(f"v_and_b32 {v(vT)}, 1, {v(vL)}")
    a.I(f"v_lshl_add_u32 {v(vRd)}, {v(vT)}, 4, {v(vRd)}")
    a.I(f"v_bfe_u32 {v(vT)}, {v(vL)}, 1, 1")
    a.I(f"v_lshl_add_u32 {v(vRd)}, {v(vT)}, 3, {v(vRd)}")
    a.I("s_mul_i32 s26, s19, 57344")
    a.I(f"v_add_u32 {v(vRd)}, s26, {v(vRd)}")
    for c in range(7):
        a.I(f"s_waitcnt vmcnt({6*(6-c)})")
        a.I("s_barrier")
        a.stamp(2+c)
        for st in range(4):
            for ct in range(2):
                for j in range(2):
                    a.I(f"ds_read_b64_tr_b16 {v(FR+8*st+4*ct+2*j,2)}, {v(vRd)} offset:{(4*c+st)*2048 + j*1024 + ct*256}")
        for st in range(4):
            a.I(f"s_waitcnt lgkmcnt({12-4*st})")
            for ct in range(2):
                C = "0" if (c == 0 and st == 0) else v(ACC + 16*ct, 16)
                a.I(f"{MF32} {v(ACC+16*ct,16)}, {v(FR+8*st+4*ct,4)}, {v(HR+16*c+4*st,4)}, {C}")
    a.stamp(9)
    a.I("s_lshl_b32 s26, s17, 12")
    a.I(f"s_add_u32 s26, s26, {RED}")
    a.I(f"v_add_u32 {v(vRed)}, s26, {v(vLane16)}")
    a.I("s_xor_b32 s26, s17, 4")
    a.I("s_lshl_b32 s26, s26, 12")
    a.I(f"s_add_u32 s26, s26, {RED}")
    a.I(f"v_add_u32 {v(vT)}, s26, {v(vLane16)}")
    a.I("s_lshl_b32 s27, s15, 6")
    a.I("s_add_u32 s27, s27, s24")
    a.I("s_mul_i32 s27, s27, 14")
    a.I("s_lshl_b32 s26, s16, 1")
    a.I("s_add_u32 s27, s27, s26")
    a.I("s_add_u32 s27, s27, s19")
    a.I("s_lshl_b32 s27, s27, 11")
    a.I(f"s_add_u32 s27, s27, {WS_PB}")
    a.I("s_cmp_eq_u32 s19, 0")
    a.I("s_cbranch_scc1 k2b_kq0")
    for var, (give, keep) in enumerate(((0, 1), (1, 0))):
        if var == 1: a.L("k2b_kq0")
        g = ACC + 16 * give; k = ACC + 16 * keep
        for i in range(4):
            a.I(f"ds_write_b128 {v(vRed)}, {v(g+4*i,4)} offset:{i*1024}")
        a.I("s_waitcnt lgkmcnt(0)")
        a.I("s_barrier")
        for i in range(4):
            a.I(f"ds_read_b128 {v(FR+4*i,4)}, {v(vT)} offset:{i*1024}")
        for hf in range(2):
            a.I(f"s_waitcnt lgkmcnt({2-2*hf})")
            for i in range(8*hf, 8*hf+8, 2):
                a.I(f"v_pk_add_f32 {v(k+i,2)}, {v(k+i,2)}, {v(FR+i,2)}")
            for i in range(8*hf, 8*hf+8, 2):
                a.I(f"v_cvt_pk_bf16_f32 {v(FR+16+i//2)}, {v(k+i)}, {v(k+i+1)}")
            a.I(f"buffer_store_dwordx4 {v(FR+16+4*hf,4)}, {v(vLane16)}, s[32:35], s27 offen offset:{hf*1024}")
        a.stamp(10)
        a.end()


def k2_amid(a):
    U = lambda sg, e, ri: 32 * sg + 8 * e + 4 * ri
    W = lambda sg, ri, tau: 64 + 32 * sg + 16 * ri + 4 * tau
    YF = 128; T = 128
    MAT = lambda c: 160 + 6 * c if c < 12 else 64 + 6 * (c - 12)
    vL = 232; vT = 233; vT2 = 234; v15 = 235; vG = 236; vA = 237; vB = 238; vWr = [239, 240]; vSt = 241
    WSET = 17408; MATL = 69632
    a.I(f"v_mov_b32 {v(vL)}, v1")
    a.I("s_lshl_b32 s14, s12, 2")
    a.I("s_add_u32 s14, s14, s13")
    a.I("s_and_b32 s15, s14, 1")
    a.I("s_lshr_b32 s14, s14, 1")
    a.I("s_and_b32 s16, s14, 1")
    a.I("s_mul_i32 s18, s15, 7")
    a.I("s_add_u32 s18, s18, s17")
    a.I(f"v_and_b32 {v(v15)}, 15, {v(vL)}")
    a.I(f"v_lshrrev_b32 {v(vG)}, 4, {v(vL)}")
    a.I(f"v_lshlrev_b32 {v(vT)}, 12, {v(vG)}")
    a.I(f"v_lshl_add_u32 {v(vT)}, {v(v15)}, 4, {v(vT)}")
    a.I("s_lshl_b32 s19, s14, 17")
    a.I("s_lshl_b32 s20, s18, 8")
    a.I("s_add_u32 s19, s19, s20")
    a.I(f"s_add_u32 s19, s19, {WS_Y}")
    a.I("s_sub_u32 s20, 0, s14")
    a.I("s_cmp_eq_u32 s14, 0")
    a.I("s_cselect_b32 s20, 16, s20")
    a.I("s_mov_b32 s44, s20")
    a.I("s_cmp_ge_u32 s17, 4")
    a.I("s_cselect_b32 s20, s20, s14")
    a.I("s_and_b32 s21, s17, 1")
    a.I("s_lshl_b32 s22, s21, 10")
    a.I("s_add_u32 s20, s20, s22")
    a.I("s_mul_i32 s22, s15, 224")
    a.I("s_lshl_b32 s23, s16, 1")
    a.I("s_sub_u32 s22, s22, s23")
    a.I("s_lshr_b32 s23, s17, 1")
    a.I(f"s_mul_i32 s23, s23, {WSET}")
    a.I(f"s_mul_i32 s24, s21, {8*1088}")
    a.I("s_add_u32 s23, s23, s24")
    a.I(f"v_lshlrev_b32 {v(vA)}, 5, {v(vG)}")
    a.I(f"v_add_u32 {v(vA)}, s20, {v(vA)}")
    a.I(f"v_lshlrev_b32 {v(vB)}, 4, {v(v15)}")
    a.I(f"v_add_u32 {v(vB)}, s22, {v(vB)}")
    a.I("s_waitcnt lgkmcnt(0)")
    srd(a, 32, "s6", "s7", "0x10000000")
    a.I("s_bitcmp1_b32 s17, 1")
    a.I("s_cselect_b32 s28, s38, s36")
    a.I("s_cselect_b32 s29, s39, s37")
    a.I("s_mov_b32 s30, 921600")
    a.I("s_mov_b32 s31, 0x20000")
    for sg in range(2):
        for e in range(4):
            a.I(f"buffer_load_dwordx4 {v(YF+16*sg+4*e,4)}, {v(vT)}, s[32:35], s19 offen")
            a.I("s_add_u32 s19, s19, 16384")
    for i in range(8):
        a.I(f"v_and_b32 {v(vT2)}, 2047, {v(vA)}")
        a.I(f"v_mad_u32_u24 {v(vT2)}, {v(vT2)}, s40, {v(vB)}")
        a.I("s_mov_b32 m0, s23")
        a.I(f"v_add_u32 {v(vA)}, 128, {v(vA)}")
        a.I(f"buffer_load_dwordx4 {v(vT2)}, s[28:31], 0 offen lds")
        a.I("s_add_u32 s23, s23, 1088")
    a.stamp(1)
    a.I("s_and_b32 s20, s17, 3")
    a.I("s_lshl_b32 s45, s20, 5")
    for which in range(2):
        if which == 1:
            a.I("s_cmp_eq_u32 s14, 0")
            a.I("s_cselect_b32 s27, 0.5, 0")
            a.I(f"s_cselect_b32 s41, 0.5, {f32hex(0.25)}")
        a.I("s_cmp_lt_u32 s17, 4" if which == 0 else "s_cmp_ge_u32 s17, 4")
        a.I("s_cselect_b32 s21, 32, 128")
        a.I(f"s_cselect_b32 s22, {'s14' if which == 0 else 's44'}, s45")
        a.I("s_cselect_b32 s23, 16, 4")
        a.I("s_cselect_b32 s24, s20, 0")
        a.I(f"s_cselect_b32 s25, {f32hex(4.0)}, 1.0")
        if which == 1:
            a.I("s_cselect_b32 s27, 0, s27")
            a.I("s_cselect_b32 s41, 0, s41")
        a.I(f"s_add_u32 s26, s17, {8*which}")
        a.I("s_mul_i32 s26, s26, 1536")
        a.I(f"v_mul_u32_u24 {v(vA)}, s21, {v(v15)}")
        a.I(f"v_add_u32 {v(vA)}, s22, {v(vA)}")
        a.I(f"v_mul_u32_u24 {v(vB)}, s23, {v(vG)}")
        a.I(f"v_add_u32 {v(vB)}, s24, {v(vB)}")
        a.I(f"v_cvt_f32_i32 {v(vA)}, {v(vA)}")
        a.I(f"v_cvt_f32_u32 {v(vB)}, {v(vB)}")
        a.I(f"v_mul_f32 {v(vA)}, {f32hex(1/2048)}, {v(vA)}")
        a.I(f"v_mul_f32 {v(vB)}, {v(vA)}, {v(vB)}")
        if which == 1:
            a.I(f"v_fma_f32 {v(vB)}, {v(vA)}, s27, {v(vB)}")
            a.I(f"v_add_f32 {v(vB)}, s41, {v(vB)}")
        a.I(f"v_mul_f32 {v(vA)}, s25, {v(vA)}")
        for q in range(4):
            a.I(f"v_fract_f32 {v(q)}, {v(vB)}")
            if q < 3: a.I(f"v_add_f32 {v(vB)}, {v(vA)}, {v(vB)}")
        for q in range(4):
            a.I(f"v_cos_f32 {v(4+q)}, {v(q)}")
            a.I(f"v_sin_f32 {v(8+q)}, {v(q)}")
        a.I(f"v_cvt_pk_bf16_f32 v14, v4, v5")
        a.I(f"v_cvt_pk_bf16_f32 v15, v6, v7")
        a.I(f"v_cvt_pk_bf16_f32 v12, -v8, -v9")
        a.I(f"v_cvt_pk_bf16_f32 v13, -v10, -v11")
        a.I(f"v_cvt_pk_bf16_f32 v16, v8, v9")
        a.I(f"v_cvt_pk_bf16_f32 v17, v10, v11")
        a.I(f"s_add_u32 s26, s26, {MATL}")
        a.I(f"v_lshlrev_b32 {v(vT)}, 4, {v(vL)}")
        a.I(f"v_add_u32 {v(vT)}, s26, {v(vT)}")
        a.I(f"v_lshlrev_b32 {v(vT2)}, 3, {v(vL)}")
        a.I(f"v_add_u32 {v(vT2)}, s26, {v(vT2)}")
        a.I(f"ds_write_b128 {v(vT)}, v[12:15]")
        a.I(f"ds_write_b64 {v(vT2)}, v[16:17] offset:1024")
    a.I(f"v_subrev_u32 {v(vT)}, s26, {v(vT)}")
    a.I(f"v_subrev_u32 {v(vT2)}, s26, {v(vT2)}")
    a.I(f"v_add_u32 {v(vT)}, {MATL}, {v(vT)}")
    a.I(f"v_add_u32 {v(vT2)}, {MATL}, {v(vT2)}")
    a.I("s_waitcnt lgkmcnt(0)")
    a.I("s_barrier")
    for c in (0, 1, 2, 3, 12, 13, 14, 15, 4, 5, 6, 7, 8, 9, 10, 11):
        a.I(f"ds_read_b128 {v(MAT(c),4)}, {v(vT)} offset:{c*1536}")
        a.I(f"ds_read_b64 {v(MAT(c)+4,2)}, {v(vT2)} offset:{c*1536+1024}")
    for i in range(88, 128, 2):
        a.I(f"v_mov_b64 {v(i,2)}, 0")
    a.I(f"v_mul_u32_u24 {v(vWr[0])}, 1088, {v(vG)}")
    a.I(f"v_lshl_add_u32 {v(vWr[0])}, {v(v15)}, 1, {v(vWr[0])}")
    a.I("s_lshl_b32 s20, s17, 4")
    a.I("s_add_u32 s20, s20, s16")
    a.I("s_lshl_b32 s20, s20, 1")
    a.I(f"v_add_u32 {v(vWr[0])}, s20, {v(vWr[0])}")
    a.I(f"v_add_u32 {v(vWr[1])}, {2*WSET}, {v(vWr[0])}")
    a.I(f"v_lshlrev_b32 {v(vSt)}, 15, {v(v15)}")
    a.I(f"v_lshl_add_u32 {v(vSt)}, {v(vG)}, 4, {v(vSt)}")
    a.I("s_lshl_b32 s19, s14, 11")
    a.I("s_lshl_b32 s20, s18, 6")
    a.I("s_add_u32 s19, s19, s20")
    a.I(f"s_add_u32 s19, s19, {WS_YC}")
    a.I("s_cmp_eq_u32 s14, 0")
    a.I("s_cselect_b32 s42, 0, 1.0")
    a.I("s_mov_b32 s43, s42")
    a.stamp(2)
    a.I("s_waitcnt vmcnt(8) lgkmcnt(0)")
    a.stamp(3)
    for sg in range(2):
        for e in range(4):
            y = v(YF + 16 * sg + 4 * e, 4)
            a.I(f"{MF16} {v(U(sg,e,0),4)}, {v(MAT(e+12*sg)+2,4)}, {y}, 0")
            a.I(f"{MF16} {v(U(sg,e,1),4)}, {v(MAT(e+12*sg),4)}, {y}, 0")
    a.I("s_nop 3")
    for i in range(64, 88, 2):
        a.I(f"v_mov_b64 {v(i,2)}, 0")
    a.I("s_waitcnt vmcnt(0)")
    a.stamp(4)
    a.I("s_barrier")
    a.stamp(5)
    a.I("s_cmp_eq_u32 s18, 7")
    a.I("s_cselect_b32 s20, 1, 0")
    a.I("s_cmp_eq_u32 s15, 0")
    a.I("s_cselect_b32 s20, s20, 0")
    a.I("s_cmp_lg_u32 s20, 0")
    a.I("s_cbranch_scc1 k2_end")
    for sg in range(2):
        for tau in range(4):
            for ri in range(2):
                for i in range(4):
                    a.I(f"ds_read_u16_d16_hi {v(W(sg,ri,tau)+i)}, {v(vWr[sg])} offset:{ri*WSET + tau*4352 + i*256}")
    def padd(d, x, y, neg=False):
        for o in (0, 2):
            m = " neg_lo:[0,1] neg_hi:[0,1]" if neg else ""
            a.I(f"v_pk_add_f32 {v(d+o,2)}, {v(x+o,2)}, {v(y+o,2)}{m}")
    def bfly(R, sign):
        ta, tb, tc, td = T, T + 8, T + 16, T + 24
        for ri in range(2):
            padd(ta + 4*ri, R(0, ri), R(2, ri))
            padd(tb + 4*ri, R(0, ri), R(2, ri), True)
            padd(tc + 4*ri, R(1, ri), R(3, ri))
            padd(td + 4*ri, R(1, ri), R(3, ri), True)
        for ri in range(2):
            padd(R(0, ri), ta + 4*ri, tc + 4*ri)
            padd(R(2, ri), ta + 4*ri, tc + 4*ri, True)
        m, pz = (1, 3) if sign < 0 else (3, 1)
        padd(R(m, 0), tb, td + 4)
        padd(R(m, 1), tb + 4, td, True)
        padd(R(pz, 0), tb, td + 4, True)
        padd(R(pz, 1), tb + 4, td)
    bfly(lambda e, ri: U(0, e, ri), -1)
    bfly(lambda e, ri: U(1, e, ri), -1)
    a.I("s_waitcnt lgkmcnt(0)")
    a.stamp(6)
    for tau in range(4):
        for o in (0, 2):
            t = T + 8 * (o // 2) + 16 * (tau & 1)
            for sg in range(2):
                xr, xi = U(sg, tau, 0) + o, U(sg, tau, 1) + o
                wr, wi = W(sg, 0, tau) + o, W(sg, 1, tau) + o
                a.I(f"v_pk_mul_f32 {v(t+4*sg,2)}, {v(xr,2)}, {v(wr,2)}")
                a.I(f"v_pk_mul_f32 {v(t+4*sg+2,2)}, {v(xr,2)}, {v(wi,2)}")
            for sg in range(2):
                xr, xi = U(sg, tau, 0) + o, U(sg, tau, 1) + o
                wr, wi = W(sg, 0, tau) + o, W(sg, 1, tau) + o
                a.I(f"v_pk_fma_f32 {v(t+4*sg,2)}, {v(xi,2)}, {v(wi,2)}, {v(t+4*sg,2)} neg_lo:[0,1,0] neg_hi:[0,1,0]")
                a.I(f"v_pk_fma_f32 {v(t+4*sg+2,2)}, {v(xi,2)}, {v(wr,2)}, {v(t+4*sg+2,2)}")
            for ri in range(2):
                qa, qb = t + 2 * ri, t + 4 + 2 * ri
                a.I(f"v_pk_fma_f32 {v(U(0,tau,ri)+o,2)}, {v(qb,2)}, s[42:43], {v(qa,2)}")
                a.I(f"v_pk_fma_f32 {v(U(1,tau,ri)+o,2)}, {v(qa,2)}, s[42:43], {v(qb,2)} neg_lo:[0,0,1] neg_hi:[0,0,1]")
    AF = 64
    OD = 96
    for sg in range(2):
        bfly(lambda e, ri: U(sg, e, ri), +1)
        for e in range(4):
            d = AF + 16 * sg + 4 * e
            a.I(f"v_cvt_pk_bf16_f32 {v(d)}, {v(U(sg,e,0))}, {v(U(sg,e,0)+1)}")
            a.I(f"v_cvt_pk_bf16_f32 {v(d+1)}, {v(U(sg,e,0)+2)}, {v(U(sg,e,0)+3)}")
            a.I(f"v_cvt_pk_bf16_f32 {v(d+2)}, -{v(U(sg,e,1))}, -{v(U(sg,e,1)+1)}")
            a.I(f"v_cvt_pk_bf16_f32 {v(d+3)}, -{v(U(sg,e,1)+2)}, -{v(U(sg,e,1)+3)}")
        for e in range(4):
            d = AF + 16 * sg + 4 * e
            M = MAT(4 + 4 * sg + e)
            a.I(f"{MF16} {v(U(sg,e,0),4)}, {v(d,4)}, {v(M+2,4)}, 0")
            a.I(f"{MF16} {v(U(sg,e,1),4)}, {v(d,4)}, {v(M,4)}, 0")
    for sg in range(2):
        a.I(f"s_add_u32 s20, s19, {sg*1024}")
        for e in range(4):
            d = OD + 16 * sg + 4 * e
            for ri in range(2):
                a.I(f"v_cvt_pk_bf16_f32 {v(d+2*ri)}, {v(U(sg,e,ri))}, {v(U(sg,e,ri)+1)}")
                a.I(f"v_cvt_pk_bf16_f32 {v(d+2*ri+1)}, {v(U(sg,e,ri)+2)}, {v(U(sg,e,ri)+3)}")
            a.I(f"buffer_store_dwordx4 {v(d,4)}, {v(vSt)}, s[32:35], s20 offen")
            if e < 3: a.I("s_add_u32 s20, s20, 524288")
    a.stamp(10)
    a.end()


def gen_k2(a):
    a.I("s_cmp_ge_u32 s2, 256")
    a.I("s_cbranch_scc1 k2_end")
    a.stamp(0)
    a.I("s_load_dwordx2 s[8:9], s[0:1], 48")
    a.I("s_load_dwordx2 s[6:7], s[0:1], 72")
    a.I("s_load_dwordx4 s[36:39], s[0:1], 8")
    a.I("v_lshrrev_b32 v2, 6, v0")
    a.I("v_and_b32 v1, 63, v0")
    a.I("v_readfirstlane_b32 s17, v2")
    a.I("s_and_b32 s12, s2, 7")
    a.I("s_lshr_b32 s13, s2, 3")
    a.I("s_movk_i32 s40, 450")
    a.I("s_cmp_lt_u32 s13, 4")
    a.I("s_cbranch_scc1 k2_amid")
    k2_b2(a)
    a.L("k2_amid")
    k2_amid(a)
    a.L("k2_end")
    a.I("s_endpgm")
```

```python
from asmlib import *
from layout import *
from gen_k1 import srd, MF32

K3_GRID = 224
K3_BLOCK = 256
YL = 57344
GB = 59392
K3_LDS = GB + 2 * 29696

def gen_k3(a):
    vL = 1; vT = 2; vT2 = 3; vYo = [4, 5]; vLane16 = 6; vYl = 7; vXo = 8; vYa = [9, 10, 11, 12]; vGa = 13; vR2 = 14; vS = 15
    ACC = 16; CI = 32; E = 48; XR_ = 56; PBR = 64; FY = 80; FG = 96; TB = 112
    a.I(f"s_cmp_ge_u32 s2, {K3_GRID}")
    a.I("s_cbranch_scc1 k3_end")
    a.stamp(0)
    a.I("s_load_dwordx2 s[4:5], s[0:1], 0")
    a.I("s_load_dwordx2 s[8:9], s[0:1], 56")
    a.I("s_load_dwordx2 s[6:7], s[0:1], 72")
    a.I("v_lshrrev_b32 v2, 6, v0")
    a.I("v_and_b32 v1, 63, v0")
    a.I("v_readfirstlane_b32 s17, v2")
    a.I("s_and_b32 s12, s2, 7")
    a.I("s_lshr_b32 s13, s2, 3")
    a.I("s_and_b32 s15, s13, 3")
    a.I("s_lshl3_add_u32 s14, s15, s12")
    a.I("s_lshr_b32 s16, s13, 2")
    a.I("s_lshr_b32 s18, s17, 1")
    a.I("s_and_b32 s19, s17, 1")
    a.I("s_getpc_b64 s[24:25]")
    a.I("s_add_u32 s24, s24, tabG@rel32@lo+4")
    a.I("s_addc_u32 s25, s25, tabG@rel32@hi+12")
    a.I(f"s_mov_b32 s26, {14*29696}")
    a.I("s_mov_b32 s27, 0x20000")
    a.I(f"v_lshlrev_b32 {v(vLane16)}, 4, {v(vL)}")
    a.I("s_lshl_b32 s20, s16, 1")
    a.I("s_add_u32 s20, s20, s19")
    a.I("s_mul_i32 s21, s20, 29696")
    a.I("s_lshl_b32 s22, s18, 11")
    a.I("s_add_u32 s40, s21, s22")
    a.I("s_mul_i32 s41, s19, 29696")
    a.I("s_add_u32 s41, s41, s22")
    a.I(f"s_add_u32 s41, s41, {GB}")
    a.I(f"v_lshrrev_b32 {v(vT)}, 3, {v(vL)}")
    a.I("s_lshl_b32 s22, s17, 4")
    a.I(f"v_add_u32 {v(vT)}, s22, {v(vT)}")
    a.I(f"v_lshlrev_b32 {v(vYo[0])}, 10, {v(vT)}")
    a.I(f"v_lshrrev_b32 {v(vT)}, 4, {v(vL)}")
    a.I(f"v_and_b32 {v(vT2)}, 7, {v(vL)}")
    a.I(f"v_xor_b32 {v(vT)}, {v(vT)}, {v(vT2)}")
    a.I(f"v_lshlrev_b32 {v(vT)}, 4, {v(vT)}")
    a.I(f"v_xor_b32 {v(vT2)}, 64, {v(vT)}")
    a.I(f"v_add3_u32 {v(vYo[1])}, {v(vYo[0])}, {v(vT2)}, s23") if False else None
    a.I(f"v_add_u32 {v(vYo[1])}, {v(vYo[0])}, {v(vT2)}")
    a.I(f"v_add_u32 {v(vYo[1])}, {7*1024}, {v(vYo[1])}")
    a.I(f"v_add_u32 {v(vYo[0])}, {v(vYo[0])}, {v(vT)}")
    a.I("s_lshl_b32 s42, s14, 16")
    a.I(f"s_add_u32 s42, s42, {WS_YC}")
    a.I("s_lshl_b32 s43, s17, 11")
    a.I(f"v_lshrrev_b32 {v(vT)}, 1, {v(vL)}")
    a.I(f"v_lshlrev_b32 {v(vYl)}, 10, {v(vT)}")
    a.I(f"v_and_b32 {v(vT)}, 1, {v(vL)}")
    a.I(f"v_lshl_add_u32 {v(vYl)}, {v(vT)}, 4, {v(vYl)}")
    a.I("s_lshl_b32 s44, s14, 1")
    a.I("s_add_u32 s44, s44, s18")
    a.I("s_lshr_b32 s45, s44, 4")
    a.I("s_and_b32 s46, s44, 15")
    a.I("s_lshl_b32 s46, s46, 2")
    a.I("s_add_u32 s45, s45, s46")
    a.I(f"v_and_b32 {v(vT)}, 31, {v(vL)}")
    a.I(f"v_lshlrev_b32 {v(vS)}, 6, {v(vT)}")
    a.I(f"v_add_u32 {v(vS)}, s45, {v(vS)}")
    a.I(f"v_mul_u32_u24 {v(vXo)}, 896, {v(vS)}")
    a.I(f"v_lshrrev_b32 {v(vT)}, 5, {v(vL)}")
    a.I(f"v_lshl_add_u32 {v(vXo)}, {v(vT)}, 4, {v(vXo)}")
    a.I("s_lshl_b32 s47, s20, 6")
    a.I("s_mul_i32 s48, s44, 14")
    a.I("s_add_u32 s48, s48, s20")
    a.I("s_lshl_b32 s48, s48, 11")
    a.I(f"s_add_u32 s48, s48, {WS_PB}")
    a.I(f"s_add_u32 s49, s48, {64*14*2048}")
    a.I("s_waitcnt lgkmcnt(0)")
    srd(a, 28, "s6", "s7", "0x10000000")
    srd(a, 32, "s4", "s5", 2048 * 896)
    srd(a, 36, "s8", "s9", 2048 * 896)
    def chunk(b):
        a.I("s_mov_b32 m0, s43")
        a.I("s_add_u32 s43, s43, 8192")
        a.I(f"buffer_load_dwordx4 {v(vYo[0])}, s[28:31], s42 offen lds")
        a.I(f"buffer_load_dwordx4 {v(vYo[1])}, s[28:31], s42 offen offset:1024 lds")
        a.I("s_mov_b32 m0, s41")
        a.I("s_add_u32 s42, s42, 128")
        a.I(f"buffer_load_dwordx4 {v(vLane16)}, s[24:27], s40 offen lds")
        a.I(f"buffer_load_dwordx4 {v(vLane16)}, s[24:27], s40 offen offset:1024 lds")
        a.I("s_add_u32 s41, s41, 4096")
        a.I("s_add_u32 s40, s40, 4096")
    chunk(0); chunk(1)
    for hf in range(2):
        a.I(f"buffer_load_dwordx4 {v(PBR+4*hf,4)}, {v(vLane16)}, s[28:31], s48 offen offset:{1024*hf}")
        a.I(f"buffer_load_dwordx4 {v(PBR+8+4*hf,4)}, {v(vLane16)}, s[28:31], s49 offen offset:{1024*hf}")
        a.I(f"buffer_load_dwordx4 {v(XR_+4*hf,4)}, {v(vXo)}, s[32:35], s47 offen offset:{32*hf}")
    for b in range(2, 7): chunk(b)
    a.I("s_cmp_lt_u32 s17, 2")
    a.I("s_cbranch_scc1 k3_lastY")
    a.I("s_sub_u32 s41, s41, 2048")
    a.I("s_sub_u32 s40, s40, 2048")
    a.I("s_mov_b32 m0, s41")
    a.I("s_nop 0")
    a.I(f"buffer_load_dwordx4 {v(vLane16)}, s[24:27], s40 offen lds")
    a.I("s_branch k3_lastdone")
    a.L("k3_lastY")
    a.I("s_lshl_b32 s22, s17, 15")
    a.I("s_add_u32 s42, s42, s22")
    a.I("s_lshl_b32 s22, s17, 10")
    a.I(f"s_add_u32 m0, s22, {YL}")
    a.I("s_nop 0")
    a.I(f"buffer_load_dwordx4 {v(vYl)}, s[28:31], s42 offen lds")
    a.L("k3_lastdone")
    a.stamp(1)
    a.I(f"v_and_b32 {v(vT)}, 31, {v(vL)}")
    a.I(f"v_bfe_u32 {v(vT2)}, {v(vL)}, 1, 3")
    a.I(f"v_lshrrev_b32 {v(vYa[1])}, 5, {v(vL)}")
    a.I(f"v_xor_b32 {v(vT2)}, {v(vT2)}, {v(vYa[1])}")
    a.I(f"v_lshlrev_b32 {v(vT2)}, 4, {v(vT2)}")
    a.I(f"v_lshl_add_u32 {v(vYa[0])}, {v(vT)}, 7, {v(vT2)}")
    a.I("s_lshl_b32 s22, s18, 12")
    a.I(f"v_add_u32 {v(vYa[0])}, s22, {v(vYa[0])}")
    a.I(f"v_lshlrev_b32 {v(vYl)}, 5, {v(vT)}")
    a.I(f"v_lshl_add_u32 {v(vYl)}, {v(vYa[1])}, 4, {v(vYl)}")
    a.I("s_lshl_b32 s22, s18, 10")
    a.I(f"s_add_u32 s22, s22, {YL}")
    a.I(f"v_add_u32 {v(vYl)}, s22, {v(vYl)}")
    a.I(f"v_cvt_f32_u32 {v(vT)}, {v(vS)}")
    a.I(f"v_mul_f32 {v(vT)}, {f32hex(1/2048)}, {v(vT)}")
    a.I(f"v_cvt_f32_u32 {v(vT2)}, {v(vYa[1])}")
    a.I(f"v_add_f32 {v(vT2)}, {v(vT2)}, {v(vT2)}")
    a.I(f"v_mul_f32 {v(vT2)}, {v(vT2)}, {v(vT)}")
    for kk in (1, 2, 3):
        a.I(f"v_xor_b32 {v(vYa[kk])}, {32*kk}, {v(vYa[0])}")
    a.I("s_mul_i32 s22, s19, 29696")
    a.I(f"s_add_u32 s22, s22, {GB}")
    a.I(f"v_add_u32 {v(vGa)}, s22, {v(vLane16)}")
    for j in range(8):
        n = 4 * (j // 2) + (j % 2)
        a.I(f"v_mov_b32 {v(TB+j)}, {f32hex(float(n))}")
        a.I(f"v_fma_f32 {v(TB+j)}, {v(TB+j)}, {v(vT)}, {v(vT2)}")
        a.I(f"v_fract_f32 {v(TB+j)}, {v(TB+j)}")
    for j in range(8):
        a.I(f"v_cos_f32 {v(TB+8+j)}, {v(TB+j)}")
        a.I(f"v_sin_f32 {v(TB+j)}, {v(TB+j)}")
    a.I(f"v_lshlrev_b32 {v(vT)}, 31, {v(vL)}")
    a.I(f"v_or_b32 {v(vT)}, 1.0, {v(vT)}")
    a.I(f"v_cmp_gt_u32 vcc, 32, {v(vL)}")
    a.I(f"v_cndmask_b32 {v(TB)}, {v(TB)}, {v(vT)}, vcc")
    for j in range(8):
        a.I(f"v_cvt_pk_bf16_f32 {v(E+j)}, {v(TB+8+j)}, {v(TB+j)}")
    NTOT = 7 * 4 + 6 + 1
    def done_after(b):
        return 4 * (b + 1) + (6 if b >= 2 else 0)
    for b in range(7):
        a.I(f"s_waitcnt vmcnt({NTOT - done_after(b)})")
        a.I("s_barrier")
        a.stamp(2+b)
        for st in range(4):
            a.I(f"ds_read_b128 {v(FY+4*st,4)}, {v(vYa[st])} offset:{b*8192}")
            a.I(f"ds_read_b128 {v(FG+4*st,4)}, {v(vGa)} offset:{(4*b+st)*1024}")
        if b == 2:
            for i in range(8):
                a.I(f"v_lshlrev_b32 {v(TB)}, 16, {v(PBR+i)}")
                a.I(f"v_and_b32 {v(TB+1)}, 0xffff0000, {v(PBR+i)}")
                a.I(f"v_lshlrev_b32 {v(TB+2)}, 16, {v(PBR+8+i)}")
                a.I(f"v_and_b32 {v(TB+3)}, 0xffff0000, {v(PBR+8+i)}")
                a.I(f"v_lshlrev_b32 {v(CI+2*i)}, 16, {v(XR_+i)}")
                a.I(f"v_and_b32 {v(CI+2*i+1)}, 0xffff0000, {v(XR_+i)}")
                a.I(f"v_pk_add_f32 {v(TB,2)}, {v(TB,2)}, {v(TB+2,2)}")
                a.I(f"v_pk_add_f32 {v(CI+2*i,2)}, {v(CI+2*i,2)}, {v(TB,2)}")
        for st in range(4):
            a.I(f"s_waitcnt lgkmcnt({6-2*st})")
            C = "0" if (b == 0 and st == 0) else v(ACC, 16)
            a.I(f"{MF32} {v(ACC,16)}, {v(FY+4*st,4)}, {v(FG+4*st,4)}, {C}")
    a.I("s_waitcnt vmcnt(0)")
    a.I("s_barrier")
    a.stamp(9)
    a.I(f"ds_read_b128 {v(FY,4)}, {v(vYl)}")
    a.I(f"ds_read_b128 {v(FG,4)}, {v(vGa)} offset:{28*1024}")
    a.I("s_waitcnt lgkmcnt(0)")
    a.I(f"{MF32} {v(ACC,16)}, {v(FY,4)}, {v(FG,4)}, {v(ACC,16)}")
    for i in range(8):
        a.I(f"v_cvt_pk_bf16_f32 {v(TB+i)}, {v(ACC+2*i)}, {v(ACC+2*i+1)}")
    a.I(f"{MF32} {v(CI,16)}, {v(TB,4)}, {v(E,4)}, {v(CI,16)}")
    a.I(f"{MF32} {v(CI,16)}, {v(TB+4,4)}, {v(E+4,4)}, {v(CI,16)}")
    for hf in range(2):
        for i in range(4):
            a.I(f"v_cvt_pk_bf16_f32 {v(FY+4*hf+i)}, {v(CI+8*hf+2*i)}, {v(CI+8*hf+2*i+1)}")
        a.I(f"buffer_store_dwordx4 {v(FY+4*hf,4)}, {v(vXo)}, s[36:39], s47 offen offset:{32*hf}")
    a.stamp(10)
    a.end()
    a.L("k3_end")
    a.I("s_endpgm")
```

```python
import struct, math
WS_HF = 0
WS_Y  = 0x800000
WS_YC = 0xC00000
WS_PB = 0xE00000
WS_R2 = 0x1200000
def f32hex(x):
    return "0x%08x" % struct.unpack("<I", struct.pack("<f", x))[0]
def bf16bits(x):
    u = struct.unpack("<I", struct.pack("<f", x))[0]
    r = (u + 0x7fff + ((u >> 16) & 1)) >> 16
    return r & 0xffff
def s2_of_u(u): return (u >> 4) + 4 * (u & 15)
def t1_of_slot(sl):
    p = sl >> 1
    if sl & 1: return -p if p else 16
    return p
def perm23(n): return (n & 19) | ((n & 4) << 1) | ((n & 8) >> 1)

def tables():
    o = []
    for n in range(448):
        c = math.cos(2 * math.pi * n / 448)
        if n in (112, 336): c = 0.0
        o.append(f".set c448_{n}, 0x{bf16bits(c):04x}")
    o.append(".set c448_448, 0")
    o.append(".set c448_449, 0x3f00")
    o.append(".set c448_450, 0xbf00")
    o.append(""".altmacro
.macro e4q QA,QB,QC,QD
.quad c448_\\QA | (c448_\\QB << 16) | (c448_\\QC << 32) | (c448_\\QD << 48)
.endm
.p2align 8
tabF:
.set qd, 0
.rept 448
e4q 449, %((qd)%448), %((qd*2)%448), %((qd*3)%448)
.set qk, 4
.rept 55
e4q %((qd*qk)%448), %((qd*(qk+1))%448), %((qd*(qk+2))%448), %((qd*(qk+3))%448)
.set qk, qk+4
.endr
e4q %(449+(qd&1)), 448, 448, 448
.zero 56
.set qd, qd+1
.endr
.set qd, 0
.rept 448
.set qk, 0
.rept 56
e4q %((qd*qk+112)%448), %((qd*(qk+1)+112)%448), %((qd*(qk+2)+112)%448), %((qd*(qk+3)+112)%448)
.set qk, qk+4
.endr
.zero 64
.set qd, qd+1
.endr
.p2align 8
tabG:
.set qc, 0
.rept 14
.set qk, 0
.rept 56
.set qn, 0
.rept 32
.set qd, 32*qc + ((qn & 19) | ((qn & 4) << 1) | ((qn & 8) >> 1))
e4q %((qd*qk)%448), %((qd*(qk+1))%448), %((qd*(qk+2))%448), %((qd*(qk+3))%448)
e4q %((qd*qk+336)%448), %((qd*(qk+1)+336)%448), %((qd*(qk+2)+336)%448), %((qd*(qk+3)+336)%448)
.set qn, qn+1
.endr
.set qk, qk+4
.endr
.set qn, 0
.rept 32
e4q %(224*(qn&1)), 448, 448, 448
.zero 8
.set qn, qn+1
.endr
.zero 512
.set qc, qc+1
.endr
.noaltmacro""")
    o.append(".p2align 8\ntabM:")
    c0 = 2.0 / (2048 * 448)
    for j in range(6):
        for l in range(64):
            t1 = t1_of_slot(l & 31); h = l >> 5
            vals = []
            for e in range(8):
                s1 = 8 * (e // 4) + 4 * h + e % 4 + 16 * (j & 1)
                n = (t1 * s1) % 32
                c = math.cos(2 * math.pi * n / 32) if j < 2 else math.sin(2 * math.pi * n / 32)
                if abs(c) < 1e-9: c = 0.0
                if j >= 4: c = -c
                vals.append(bf16bits(c * c0) if c != 0 else 0)
            q = lambda w: w[0] | (w[1] << 16) | (w[2] << 32) | (w[3] << 48)
            o.append(f".quad 0x{q(vals[:4]):x}, 0x{q(vals[4:]):x}")
    return "\n".join(o) + "\n"
```

```python
import sys
from asmlib import *
from layout import *
import gen_k1
kernels = [("k1_kernel", gen_k1.gen_k1, 256, 512, gen_k1.K1_LDS, 256)]
try:
    import gen_k2
    kernels.append(("k2_kernel", gen_k2.gen_k2, 256, 512, gen_k2.K2_LDS, 256))
    import gen_k3
    kernels.append(("k3_kernel", gen_k3.gen_k3, gen_k3.K3_GRID, gen_k3.K3_BLOCK, gen_k3.K3_LDS, 256))
except ImportError as e:
    print("note:", e, file=sys.stderr)
out = []
for name, fn, grid, block, lds, nv in kernels:
    out.append(f"; @launch kernel={name} grid=({grid},1,1) block=({block},1,1) lds={lds}")
out.append('.amdgcn_target "amdgcn-amd-amdhsa--gfx950"')
out.append(".text")
bad = 0
import os
Asm.STAMP = bool(os.environ.get("STAMP"))
for kidx, (name, fn, grid, block, lds, nv) in enumerate(kernels):
    a = Asm(); a.kidx = kidx
    fn(a)
    bad += a.verify_edges()
    print(name, "instrs", sum(1 for i in a.ins if i.kind != "none"), "nops added", a.nops_added, file=sys.stderr)
    out.append(f".globl {name}\n.p2align 8\n.type {name},@function\n{name}:")
    out.append(a.text())
out.append("code_end:")
out.append('.section .rodata,"a"')
for name, fn, grid, block, lds, nv in kernels:
    out.append(f""".p2align 6
.amdhsa_kernel {name}
  .amdhsa_next_free_vgpr {nv}
  .amdhsa_next_free_sgpr 102
  .amdhsa_accum_offset {nv}
  .amdhsa_group_segment_fixed_size 0
  .amdhsa_kernarg_size 80
  .amdhsa_user_sgpr_count 2
  .amdhsa_user_sgpr_kernarg_segment_ptr 1
  .amdhsa_system_sgpr_workgroup_id_x 1
.end_amdhsa_kernel""")
out.append(tables())
dst = sys.argv[1] if len(sys.argv) > 1 else "parallel_sum__spectral_gfnet__glu_gated_bilinear__prompt.s"
open(dst, "w").write("\n".join(out))
assert bad == 0
```

```python
import re,sys
src=open('v2_38p6us.s').read()
lines=src.split('\n')
L={}
body=[]
for l in lines:
    m=re.match(r'; @launch kernel=(\w+)_kernel',l)
    if m: L[m.group(1)]=l
    else: body.append(l)
L['e0']='; @launch kernel=e0_kernel grid=(256,1,1) block=(64,1,1) lds=0'
L['t0']='; @launch kernel=t0_kernel grid=(256,1,1) block=(512,1,1) lds=0'
E0='''.globl e0_kernel
.p2align 8
.type e0_kernel,@function
e0_kernel:
  s_endpgm
'''
T0='''.globl t0_kernel
.p2align 8
.type t0_kernel,@function
t0_kernel:
  s_cmp_ge_u32 s2, 256
  s_cbranch_scc1 t0_end
  s_load_dwordx2 s[4:5], s[0:1], 0
  s_load_dwordx4 s[8:11], s[0:1], 8
  s_load_dwordx4 s[12:15], s[0:1], 32
  s_load_dwordx2 s[16:17], s[0:1], 48
  s_lshr_b32 s3, s2, 3
  s_lshl_b32 s3, s3, 9
  v_add_u32 v1, s3, v0
  v_lshlrev_b32 v1, 7, v1
  s_waitcnt lgkmcnt(0)
'''
def t(lo,hi,n):
    return f'''  s_mov_b32 s20, {lo}
  s_mov_b32 s21, {hi}
  s_mov_b32 s22, {n}
  s_mov_b32 s23, 0x20000
  buffer_load_dword v2, v1, s[20:23], 0 offen
'''
T0+=t('s4','s5',2048*896)+t('s8','s9',921600)+t('s10','s11',921600)+t('s12','s13',448*3584)+t('s14','s15',448*3584)+t('s16','s17',448*3584)
T0+='''  s_getpc_b64 s[20:21]
  s_add_u32 s20, s20, tabF@rel32@lo+4
  s_addc_u32 s21, s21, tabF@rel32@hi+12
  s_mov_b32 s22, 880000
  s_mov_b32 s23, 0x20000
  buffer_load_dword v2, v1, s[20:23], 0 offen
  s_getpc_b64 s[20:21]
  s_add_u32 s20, s20, k1_kernel@rel32@lo+4
  s_addc_u32 s21, s21, k1_kernel@rel32@hi+12
  s_mov_b32 s22, code_end-k1_kernel
  s_mov_b32 s23, 0x20000
  buffer_load_dword v2, v1, s[20:23], 0 offen
  s_waitcnt vmcnt(0)
t0_end:
  s_endpgm
'''
KD='''.p2align 6
.amdhsa_kernel %s
  .amdhsa_next_free_vgpr 32
  .amdhsa_next_free_sgpr 102
  .amdhsa_accum_offset 32
  .amdhsa_group_segment_fixed_size 0
  .amdhsa_kernarg_size 80
  .amdhsa_user_sgpr_count 2
  .amdhsa_user_sgpr_kernarg_segment_ptr 1
  .amdhsa_system_sgpr_workgroup_id_x 1
.end_amdhsa_kernel
'''
def mk(name, lst):
    b='\n'.join(body[1:])
    extra=''; kd=''
    if 'e0' in lst: extra+=E0; kd+=KD%'e0_kernel'
    if 't0' in lst: extra+=T0; kd+=KD%'t0_kernel'
    b=b.replace('code_end:\n.section .rodata,"a"\n', 'code_end:\n'+extra+'.section .rodata,"a"\n'+kd)
    open(name,'w').write(body[0]+'\n'+'\n'.join(L[k] for k in lst)+'\n'+b)
mk('A.s',['k1','k2','k3'])
mk('B.s',['k1','k2','k3','k1'])
mk('C.s',['k1','k2','k3','k2'])
mk('D.s',['k1','k2','k3','k3'])
mk('E.s',['e0','k1','k2','k3'])
mk('F.s',['t0','k1','k2','k3'])
```

```python
import sys
src = open("versions/v5_30p6.s").read()
key = "  s_cbranch_scc1 f_end\n"
i = src.index(key) + len(key)
def lat(off, n, base):
    return f"""  s_load_dwordx2 s[4:5], s[0:1], {off}
  s_mov_b32 s6, 0x10000000
  s_mov_b32 s7, 0x20000
  s_mul_i32 s8, s2, 7168
  s_add_u32 s8, s8, {base}
  v_mov_b32 v1, 0
  s_mov_b32 s9, 0
  v_cmp_gt_u32 vcc, 64, v0
  s_waitcnt lgkmcnt(0)
  s_cbranch_vccz pb_skip
pb_loop:
  buffer_load_dword v2, v1, s[4:7], s8 offen
  s_add_u32 s8, s8, 128
  s_add_u32 s9, s9, 1
  s_waitcnt vmcnt(0)
  s_cmp_lt_u32 s9, {n}
  s_cbranch_scc1 pb_loop
pb_skip:
  s_barrier
""".replace("0x10000000", "1835008" if off == 24 else "0x10000000")
def bw(kb, aux):
    return f"""  s_load_dwordx2 s[4:5], s[0:1], 72
  s_mov_b32 s6, 0x10000000
  s_mov_b32 s7, 0x20000
  s_mul_i32 s8, s2, {kb*1024}
  s_add_u32 s8, s8, 0x8000000
  v_lshlrev_b32 v1, 4, v0
  s_mov_b32 s9, 0
  s_waitcnt lgkmcnt(0)
pb_loop:
  buffer_load_dwordx4 v[2:5], v1, s[4:7], s8 offen {aux}
  s_add_u32 s8, s8, 8192
  s_add_u32 s9, s9, 1
  s_cmp_lt_u32 s9, {kb//8}
  s_cbranch_scc1 pb_loop
  s_waitcnt vmcnt(0)
  s_barrier
"""
for nm, t in (("pl_bx", lat(24, 24, 0)), ("pl_ws", lat(72, 24, 0x8000000)), ("pb_d", bw(128, "")), ("pb_nt", bw(128, "nt"))):
    open(f"f/{nm}.s", "w").write(src[:i] + t + src[i:])
for nm, t in (("pl_bx1", lat(24, 1, 0)), ("pl_bx12", lat(24, 12, 0)), ("pl_ws1", lat(72, 1, 0x8000000)), ("pl_ws12", lat(72, 12, 0x8000000))):
    open(f"f/{nm}.s", "w").write(src[:i] + t + src[i:])
```
